```python
import torch

def _softmax(x, axis=-1):
    return torch.softmax(x, dim=axis)
def _gelu(x):
    return torch.nn.functional.gelu(x, approximate="tanh")
def _silu(x):
    return torch.nn.functional.silu(x)
def _sigmoid(x):
    return torch.sigmoid(x)
def _layernorm(x, axis=-1, eps=1e-5):
    m = x.mean(dim=axis, keepdim=True)
    v = x.var(dim=axis, keepdim=True, unbiased=False)
    return (x - m) / torch.sqrt(v + eps)
def _scatter_add(tgt, idx, src, axis=0):
    return tgt.clone().index_add_(axis, idx, src)
def _segment_sum(src, seg, n):
    out = torch.zeros((n,) + src.shape[1:], dtype=src.dtype)
    return out.index_add_(0, seg, src)
def _pad(x, pw):
    flat = tuple(v for pair in reversed(pw) for v in pair)
    return torch.nn.functional.pad(x, flat)

kernel_name = 'gather_scatter__hybrid_graph_tf_exphormer__graph'

def setup_inputs():

    _w = (lambda a: (lambda t: t.to(torch.bfloat16) if t.is_floating_point() else t)(torch.as_tensor(a)))
    N, deg, D = 10000, 16, 256
    E = N * deg
    exp_deg = 4
    Ee = N * exp_deg
    src = (lambda lo, hi, *s: torch.randint(lo, hi, s))(0, N, E).to(torch.int64)
    dst = (lambda lo, hi, *s: torch.randint(lo, hi, s))(0, N, E).to(torch.int64)
    esrc = (lambda lo, hi, *s: torch.randint(lo, hi, s))(0, N, Ee).to(torch.int64)
    edst = torch.repeat_interleave(torch.arange(N), exp_deg).to(torch.int64)
    deg_cnt = torch.bincount(dst, minlength=N).to(float) + 1.0
    return {
        "x": _w((lambda *s: torch.randn(*s, dtype=torch.bfloat16) * 0.05)(N, D)),
        "src": _w(src),
        "dst": _w(dst),
        "esrc": _w(esrc),
        "edst": _w(edst),
        "deg_inv_sqrt": _w(1.0 / (lambda _x: torch.sqrt(torch.as_tensor(_x)))(deg_cnt)),
        "w_l": _w((lambda *s: torch.randn(*s, dtype=torch.bfloat16) * 0.05)(D, D)),
        "wq": _w((lambda *s: torch.randn(*s, dtype=torch.bfloat16) * 0.05)(D, D)),
        "wk": _w((lambda *s: torch.randn(*s, dtype=torch.bfloat16) * 0.05)(D, D)),
        "wv": _w((lambda *s: torch.randn(*s, dtype=torch.bfloat16) * 0.05)(D, D)),
    }

def reference(x, src, dst, esrc, edst, deg_inv_sqrt, w_l, wq, wk, wv):
    N, D = x.shape
    h = x @ w_l
    msg = h[src] * deg_inv_sqrt[src, None] * deg_inv_sqrt[dst, None]
    h_local = _segment_sum(msg, dst, N)
    q = x @ wq
    k = x @ wk
    v = x @ wv
    e = (q[edst] * k[esrc]).sum(-1) * (D ** -0.5)
    exp_e = torch.exp(e)
    denom = _segment_sum(exp_e[:, None], edst, N)[:, 0] + 1e-9
    alpha = exp_e / denom[edst]
    h_attn = _segment_sum(alpha[:, None] * v[esrc], edst, N)
    return h_local + h_attn
```

```python
import re

def regs_of(tok):
    tok = tok.strip()
    tok = re.sub(r'^(-|abs\(|neg\()', '', tok).rstrip(')')
    m = re.fullmatch(r'([vsa])(\d+)', tok)
    if m: return [m.group(1) + m.group(2)]
    m = re.fullmatch(r'([vsa])\[(\d+):(\d+)\]', tok)
    if m: return [m.group(1) + str(i) for i in range(int(m.group(2)), int(m.group(3)) + 1)]
    if tok in ('vcc', 'vcc_lo', 'vcc_hi'): return ['vcc']
    if tok in ('exec', 'exec_lo', 'exec_hi'): return ['exec']
    if tok == 'm0': return ['m0']
    return []

TRANS = ('v_exp_', 'v_log_', 'v_rcp_', 'v_rsq_', 'v_sqrt_', 'v_sin_', 'v_cos_')

class Ins:
    __slots__ = ('text', 'op', 'ops', 'mods', 'w', 'r', 'kind', 'label', 'target', 'srcc', 'srcab', 'states', 'dpp')
    def __init__(self, text):
        self.text = text
        self.label = None; self.target = None
        self.w = []; self.r = []; self.srcc = []; self.srcab = []
        self.kind = 'other'; self.states = 1; self.dpp = False
        t = text.split(';')[0].strip()
        if not t or t.startswith('.'):
            self.kind = 'dir'; self.states = 0; self.op = ''; return
        if t.endswith(':'):
            self.kind = 'label'; self.label = t[:-1]; self.states = 0; self.op = ''; return
        parts = t.split(None, 1)
        self.op = op = parts[0]
        rest = parts[1] if len(parts) > 1 else ''
        ops = []; depth = 0; cur = ''
        for ch in rest:
            if ch == '[': depth += 1
            if ch == ']': depth -= 1
            if ch == ',' and depth == 0: ops.append(cur.strip()); cur = ''
            else: cur += ch
        if cur.strip(): ops.append(cur.strip())
        mods = ''
        if ops:
            last = ops[-1].split(None, 1)
            if len(last) > 1: ops[-1] = last[0]; mods = last[1]
        self.ops = ops; self.mods = mods
        R = lambda i: regs_of(ops[i]) if i < len(ops) else []
        allr = lambda a: [x for i in range(a, len(ops)) for x in regs_of(ops[i])]
        if op == 's_nop':
            self.kind = 'nop'; self.states = int(ops[0], 0) + 1
        elif op.startswith('v_mfma'):
            self.kind = 'mfma'; self.w = R(0); self.srcab = R(1) + R(2); self.srcc = R(3); self.r = self.srcab + self.srcc + ['exec']
        elif op.startswith('v_'):
            self.kind = 'valu'
            self.dpp = ('_dpp' in op) or ('row_' in mods) or ('quad_perm' in mods)
            if op.startswith('v_cmpx'):
                self.w = R(0) + ['exec']; self.r = allr(1)
            elif op.startswith('v_permlane') and 'swap' in op:
                self.w = R(0) + R(1); self.r = R(0) + R(1)
            elif op.startswith('v_swap'):
                self.w = R(0) + R(1); self.r = R(0) + R(1)
            elif re.match(r'v_(add|sub|subrev|addc|subb)_co_', op):
                self.w = R(0) + R(1); self.r = allr(2)
            else:
                self.w = R(0); self.r = allr(1)
                if op.startswith(('v_dot2c', 'v_fmac', 'v_writelane')) or 'UNUSED_PRESERVE' in mods or (self.dpp and 'bound_ctrl' not in mods and op.startswith('v_mov')):
                    self.r = self.r + R(0)
                if op.startswith('v_cndmask') and len(ops) == 3: self.r = self.r + ['vcc']
            self.r = self.r + ['exec']
        elif op.startswith('ds_'):
            self.kind = 'ds'
            if op.startswith('ds_read') or '_rtn' in op or op.startswith(('ds_swizzle', 'ds_bpermute', 'ds_permute')):
                self.w = R(0); self.r = allr(1)
            else:
                self.r = allr(0)
            self.r = self.r + ['exec']
        elif op.startswith(('buffer_', 'global_')):
            self.kind = 'vmem'
            lds = re.search(r'\blds\b', mods) is not None or '_lds_' in op
            if lds:
                self.r = allr(0) + ['m0']; self.kind = 'vmemlds'
            elif '_load' in op:
                self.w = R(0); self.r = allr(1)
            elif '_atomic' in op and 'sc0' in mods:
                self.w = R(0)[:1]; self.r = allr(0)
            else:
                self.r = allr(0)
            self.r = self.r + ['exec']
        elif op.startswith('s_'):
            self.kind = 'salu'
            if op.startswith(('s_cbranch', 's_branch')):
                self.kind = 'branch'; self.target = ops[0]
                if 'vcc' in op: self.r = ['vcc']
                if 'exec' in op: self.r = ['exec']
            elif op.startswith('s_call'):
                self.kind = 'branch'; self.target = ops[1]; self.w = R(0)
            elif op.startswith('s_setpc'):
                self.kind = 'ret'; self.r = R(0)
            elif op.startswith(('s_cmp', 's_bitcmp', 's_waitcnt', 's_barrier', 's_sleep', 's_setprio', 's_endpgm')):
                self.r = allr(0)
            elif op.startswith('s_load') or op.startswith('s_mem'):
                self.kind = 'smem'; self.w = R(0); self.r = allr(1)
            elif 'saveexec' in op:
                self.w = R(0) + ['exec']; self.r = allr(1) + ['exec']
            else:
                self.w = R(0); self.r = allr(1)
        else:
            raise ValueError('unknown instruction: ' + text)

def is_wide_store(i):
    return i.kind == 'vmem' and re.search(r'store_dwordx[34]', i.op)

def need(p, c):
    n = 0
    pw = set(p.w); cr = set(c.r); cw = set(c.w)
    pv = {x for x in pw if x[0] in 'va' and x != 'vcc'}
    ps = {x for x in pw if x[0] == 's' or x == 'vcc'}
    if p.kind == 'valu':
        if c.kind == 'mfma' and pv & cr: n = max(n, 2)
        if c.kind == 'mfma' and 'exec' in pw: n = max(n, 4)
        if c.kind == 'valu' and c.dpp and pv & cr: n = max(n, 2)
        if c.kind == 'valu' and c.dpp and 'exec' in pw: n = max(n, 5)
        if c.kind == 'valu' and c.op.startswith('v_permlane') and pv & cr: n = max(n, 2)
        if c.kind == 'valu' and c.op.startswith(('v_readlane', 'v_readfirstlane')) and pv & cr: n = max(n, 1)
        if c.kind in ('vmem', 'vmemlds') and ps & cr: n = max(n, 5)
        if c.kind == 'valu' and ps & cr: n = max(n, 4 if c.op.startswith(('v_readlane', 'v_writelane', 'v_div_fmas')) else 2)
        if 'exec' in pw and c.kind == 'valu' and c.op.startswith(('v_readlane', 'v_readfirstlane', 'v_writelane', 'v_permlane')): n = max(n, 4)
        if p.op.startswith(TRANS) and c.kind in ('valu',) and not c.op.startswith(TRANS) and pv & cr: n = max(n, 1)
        if p.op.startswith('v_dot2') and c.kind in ('valu', 'mfma') and pv & (cr | cw):
            same = (c.op.replace('_e32', '') == p.op.replace('_e32', ''))
            if same:
                ab = set()
                if c.op.startswith('v_dot2c'): ab = set(regs_of(c.ops[1]) + regs_of(c.ops[2]))
                else: ab = set(regs_of(c.ops[1]) + regs_of(c.ops[2]))
                if pv & ab: n = max(n, 3)
            else: n = max(n, 3)
        if ('op_sel' in getattr(p, 'mods', '') and 'dst_sel' in getattr(p, 'mods', '')) or 'dst_sel:WORD_1' in getattr(p, 'mods', ''):
            if c.kind == 'valu' and pv & (cr | cw): n = max(n, 1)
        if c.kind == 'branch' and 'vcc' in ps and 'vcc' in cr: n = max(n, 1)
    if p.kind == 'salu' and 'm0' in pw and c.kind == 'vmemlds': n = max(n, 1)
    if p.kind == 'mfma':
        passes = 8 if '32x32' in p.op else 4
        d = {4: (8, 6, 3), 8: (12, 10, 7)}[passes]
        if c.kind == 'mfma':
            if pv & set(c.srcab): n = max(n, d[0])
            if pv & set(c.srcc) and (set(c.srcc) != pv or c.op != p.op): n = max(n, d[1])
            if pv & cw and not (set(c.srcc) == pv and c.op == p.op): n = max(n, d[1])
        elif c.kind in ('valu', 'ds', 'vmem', 'vmemlds') and pv & (cr | cw): n = max(n, d[0])
        if c.kind == 'valu' and set(p.srcc) & cw: n = max(n, d[2])
    if is_wide_store(p) and c.kind in ('valu', 'mfma', 'ds', 'vmem'):
        data = set(regs_of(p.ops[0] if p.op.startswith('buffer') else p.ops[1]))
        if data & cw: n = max(n, 2)
    return n

WIN = 16

class Prog:
    def __init__(self):
        self.ins = []
    def __call__(self, text):
        for l in text.split('\n'):
            l = l.strip()
            if l and not l.startswith(';'): self.ins.append(Ins(l))
    def label(self, name): self.ins.append(Ins(name + ':'))

    def fix_linear(self):
        out = []; added = 0
        for c in self.ins:
            if c.states and c.kind != 'nop':
                dist = 0; req = 0
                for p in reversed(out):
                    if p.kind == 'ret' or (p.kind == 'branch' and p.op == 's_branch') or p.op == 's_endpgm': break
                    if p.states and p.kind != 'nop':
                        k = need(p, c) - dist
                        if k > req: req = k
                    dist += p.states
                    if dist > WIN: break
                if req > 0:
                    out.append(Ins('s_nop %d ; auto' % (req - 1))); added += req
            out.append(c)
        self.ins = out
        return added

    def fix_edges(self):
        labels = {i.label: n for n, i in enumerate(self.ins) if i.kind == 'label'}
        rets_to = [n + 1 for n, i in enumerate(self.ins) if i.op.startswith('s_call')]
        fixes = {}
        for b, br in enumerate(self.ins):
            if br.kind == 'branch': tgts = [labels[br.target]] if br.target in labels else []
            elif br.kind == 'ret': tgts = rets_to
            else: continue
            for t in tgts:
                prods = []; dist = 1
                for p in reversed(self.ins[:b]):
                    if p.kind == 'ret' or (p.kind == 'branch' and p.op == 's_branch') or p.op == 's_endpgm': break
                    if p.states and p.kind != 'nop': prods.append((p, dist))
                    dist += p.states
                    if dist > WIN: break
                d2 = 0
                for c in self.ins[t:]:
                    if c.states and c.kind != 'nop':
                        for p, d in prods:
                            k = need(p, c) - (d + d2)
                            if k > 0: fixes[b] = max(fixes.get(b, 0), k)
                    d2 += c.states
                    if d2 > WIN or c.kind == 'ret' or c.op in ('s_branch', 's_endpgm'): break
        if fixes:
            out = []
            for n, i in enumerate(self.ins):
                if n in fixes: out.append(Ins('s_nop %d ; auto edge' % (fixes[n] - 1)))
                out.append(i)
            self.ins = out
        return sum(fixes.values())

    def finish(self):
        a = self.fix_linear()
        b = 0
        for _ in range(4):
            k = self.fix_edges(); b += k
            if not k: break
        return a, b
    def text(self):
        return '\n'.join(('' if i.kind in ('label',) else '    ') + i.text for i in self.ins) + '\n'
```

```python
import sys, os
sys.path.insert(0, os.path.dirname(os.path.abspath(__file__)))
from asmlib import Prog

KNAME = "gather_scatter__hybrid_graph_tf_exphormer__graph_kernel"

SEM = 0
RING = 256
XB = RING + 65536
YB = XB + 20480
ZB = YB + 20480
IMG = ZB
DIS = ZB
SIMG = ZB + 20480
LDS_TOTAL = SIMG + 32768
S_X, S_Q, S_QK, S_AA, S_AL, S_CPY, S_I, S_L, CNT, S_R = 0, 4, 8, 12, 16, 20, 24, 28, 32, 48
assert IMG + 32768 <= LDS_TOTAL and LDS_TOTAL <= 163840

NWG = 250
NPROD = 64
SLOT0 = 65536
STAMP0 = 8 << 20
EMPTY = 0xFC000
TAGINC = 0x2C5
SPIN_MAX = 1 << 21

def v(n, c=1): return f"v{n}" if c == 1 else f"v[{n}:{n+c-1}]"
def s(n, c=1): return f"s{n}" if c == 1 else f"s[{n}:{n+c-1}]"

class Opt:
    stamps = False
    force_slow = False
    slot_cap = 31

def build(opt=Opt):
    p = Prog()
    lbl = [0]
    def newl(n):
        lbl[0] += 1
        return f"L_{n}_{lbl[0]}"

    TID, LANE, ZERO, ONE = 0, 1, 2, 3
    SEMA = ZERO
    WV, LINK, W = 3, 30, 32
    T0, T1, T2 = 33, 34, 35
    SRD_X, SRD_OUT, SRD_SRC, SRD_DST = 36, 40, 44, 48
    STAMP = 90

    nstamp = [0]
    def stamp(slot):
        if not opt.stamps: return
        p(f"""s_memrealtime s[90:91]
        s_waitcnt lgkmcnt(0)
        v_writelane_b32 v0, s90, {slot}""")
    def stamp_out():
        if not opt.stamps: return
        p(f"""s_lshl_b32 s92, s2, 3
        s_add_u32 s92, s92, s{WV}
        s_lshl_b32 s92, s92, 7
        s_add_u32 s92, s92, {STAMP0}
        v_lshlrev_b32 v20, 2, v{LANE}
        v_add_u32 v20, s92, v20
        s_mov_b32 exec_hi, 0
        global_store_dword v20, v0, s[28:29]
        s_mov_b64 exec, -1""")

    def srd(base, ptr, size):
        p(f"""s_mov_b32 s{base}, s{ptr}
        s_mov_b32 s{base+1}, s{ptr+1}
        s_mov_b32 s{base+2}, {size}
        s_mov_b32 s{base+3}, 0x20000""")

    def signal(off, val=ONE):
        p(f"""s_mov_b64 exec, 1
        ds_add_u32 v{SEMA}, v{val} offset:{off}
        s_mov_b64 exec, -1""")

    def semwait(off, target, tmpv, mask=None, keep=None):
        L = newl("sw")
        p.label(L)
        p(f"""ds_read_b32 v{tmpv}, v{SEMA} offset:{off}
        s_waitcnt lgkmcnt(0)
        v_readfirstlane_b32 s{T0}, v{tmpv}""")
        if keep is not None: p(f"s_mov_b32 s{keep}, s{T0}")
        if mask is not None: p(f"s_and_b32 s{T0}, s{T0}, {mask}")
        L2 = newl("sd")
        p(f"""s_cmp_ge_u32 s{T0}, {target}
        s_cbranch_scc1 {L2}
        s_add_u32 s93, s93, 1
        s_cmp_lt_u32 s93, {SPIN_MAX}
        s_cbranch_scc1 {L}
        s_endpgm""")
        p.label(L2)

    p(f"""s_cmp_gt_u32 s2, {NWG}
    s_cbranch_scc1 L_end
    s_load_dwordx16 s[4:19], s[0:1], 0
    s_load_dwordx8 s[20:27], s[0:1], 64
    s_load_dwordx2 s[28:29], s[0:1], 96
    v_lshrrev_b32 v4, 6, v0
    v_and_b32 v{LANE}, 63, v0
    v_readfirstlane_b32 s{WV}, v4
    v_mov_b32 v{ZERO}, 0
    v_mov_b32 v{ONE}, 1
    s_mov_b32 s93, 0
    v_lshlrev_b32 v4, 2, v{LANE}
    s_cmp_eq_u32 s2, {NWG}
    s_cbranch_scc1 L_upd
    ds_write_b32 v4, v{ZERO}
    s_and_b32 s{W}, s{WV}, 3
    s_cmp_ge_u32 s2, {NPROD}
    s_cbranch_scc1 L_noimg
    v_mov_b32 v8, {EMPTY}
    v_mov_b32 v9, {EMPTY}
    v_mov_b32 v10, {EMPTY}
    v_mov_b32 v11, {EMPTY}
    v_lshlrev_b32 v4, 4, v0
    v_add_u32 v4, {IMG}, v4
    ds_write_b128 v4, v[8:11]
    ds_write_b128 v4, v[8:11] offset:8192
    ds_write_b128 v4, v[8:11] offset:16384
    ds_write_b128 v4, v[8:11] offset:24576
    v_lshlrev_b32 v4, 2, v0
    s_mul_i32 s{T0}, s2, 10000
    s_movk_i32 s{T1}, 4096
    s_movk_i32 s{T2}, 8192
    s_waitcnt lgkmcnt(0)""")
    BD, BS, BB, BH, BR, BT = 200, 205, 210, 215, 220, 225
    p(f"""s_add_u32 s{SRD_DST}, s8, s{T0}
    s_addc_u32 s{SRD_DST+1}, s9, 0
    s_mov_b32 s{SRD_DST+2}, 10000
    s_mov_b32 s{SRD_DST+3}, 0x20000
    s_add_u32 s{SRD_SRC}, s6, s{T0}
    s_addc_u32 s{SRD_SRC+1}, s7, 0
    s_mov_b32 s{SRD_SRC+2}, 10000
    s_mov_b32 s{SRD_SRC+3}, 0x20000""")
    for i, (so, im) in enumerate([("0", 0), ("0", 2048), (f"s{T1}", 0), (f"s{T1}", 2048), (f"s{T2}", 0)]):
        p(f"buffer_load_dword v{BD+i}, v4, s[{SRD_DST}:{SRD_DST+3}], {so} offen offset:{im}")
    for i, (so, im) in enumerate([("0", 0), ("0", 2048), (f"s{T1}", 0), (f"s{T1}", 2048), (f"s{T2}", 0)]):
        p(f"buffer_load_dword v{BS+i}, v4, s[{SRD_SRC}:{SRD_SRC+3}], {so} offen offset:{im}")
    p.label("L_noimg")
    p("s_waitcnt lgkmcnt(0)")
    if opt.stamps: p('v_mov_b32 v0, 0')
    stamp(0)
    srd(SRD_X, 4, 5120000)
    srd(SRD_OUT, 24, 5120000)
    p(f"""s_cmp_ge_u32 s{WV}, 4
    s_cbranch_scc1 L_A""")

    DC, DK, DT = 4, 8, 12
    VT, VK, VB, VF01, VF2 = 16, 20, 22, 26, 27
    VQ01, VQ2, VQK, VOUT = 28, 29, 30, 34
    GT = 38
    PA, PB, QA, QB = 48, 64, 76, 92
    ACC1, ACC2 = 104, 152
    SRD_W, SRD_PF, SOFF, RB, IT = 52, 56, 60, 64, 65
    J, G4 = 240, 241

    p(f"""s_cmp_eq_u32 s{W}, 1
    s_cselect_b64 s[{SRD_PF}:{SRD_PF+1}], s[20:21], s[18:19]
    s_cmp_eq_u32 s{W}, 2
    s_cselect_b64 s[{SRD_PF}:{SRD_PF+1}], s[22:23], s[{SRD_PF}:{SRD_PF+1}]
    s_cmp_eq_u32 s{W}, 3
    s_cselect_b64 s[{SRD_PF}:{SRD_PF+1}], s[16:17], s[{SRD_PF}:{SRD_PF+1}]
    s_mov_b32 s{SRD_PF+2}, 131072
    s_mov_b32 s{SRD_PF+3}, 0x20000
    s_lshr_b32 s{T0}, s2, 3
    s_and_b32 s{T0}, s{T0}, 31
    s_lshl_b32 s{T0}, s{T0}, 12
    v_lshlrev_b32 v{GT}, 7, v{LANE}
    s_mov_b32 exec_hi, 0
    buffer_load_dword v{GT+1}, v{GT}, s[{SRD_PF}:{SRD_PF+3}], s{T0} offen
    s_mov_b32 exec_hi, -1""")
    stamp(12)
    p(f"""v_lshrrev_b32 v{GT+2}, 5, v{LANE}
    s_mul_i32 s{T0}, s{W}, 10
    v_add_u32 v{GT+2}, s{T0}, v{GT+2}
    v_and_b32 v{GT+3}, 31, v{LANE}
    s_mul_i32 s{T1}, s2, 20480
    s_mul_i32 s{T2}, s{W}, 5120
    s_add_u32 s{T2}, s{T2}, {XB}""")
    for k in range(5):
        p(f"""v_and_b32 v{GT+4}, 15, v{GT+2}
        v_xor_b32 v{GT+4}, v{GT+4}, v{GT+3}
        v_lshlrev_b32 v{GT+4}, 4, v{GT+4}
        v_lshl_add_u32 v{GT+4}, v{GT+2}, 9, v{GT+4}
        s_add_u32 m0, s{T2}, {k*1024}
        v_add_u32 v{GT+2}, 2, v{GT+2}
        buffer_load_dwordx4 v{GT+4}, s[{SRD_X}:{SRD_X+3}], s{T1} offen lds""")
    p(f"""v_lshrrev_b32 v{GT}, 3, v{LANE}
    v_and_b32 v{GT+2}, 7, v{LANE}
    v_and_b32 v{GT+3}, 2, v{GT}
    v_xor_b32 v{GT+3}, v{GT+3}, v{GT+2}
    v_lshlrev_b32 v{GT+4}, 9, v{GT}
    s_lshl_b32 s{T0}, s{W}, 7
    v_add_u32 v{GT+4}, s{T0}, v{GT+4}
    v_lshl_add_u32 v{DT}, v{GT+3}, 4, v{GT+4}
    v_xor_b32 v{GT+3}, 4, v{GT+3}
    v_lshl_add_u32 v{DT+1}, v{GT+3}, 4, v{GT+4}
    v_add_u32 v{DT+2}, {2*15360}, v{DT}
    v_add_u32 v{DT+3}, {3*15360}, v{DT+1}
    v_add_u32 v{DT+1}, {15360}, v{DT+1}
    s_lshl_b32 s{RB}, s{W}, 14
    s_add_u32 s{RB}, s{RB}, {RING}""")
    p(f"""s_mov_b32 s{SRD_W}, s18
    s_mov_b32 s{SRD_W+1}, s19
    s_mov_b32 s{SRD_W+2}, 131072
    s_mov_b32 s{SRD_W+3}, 0x20000""")

    def set_soff_T(h):
        for j in range(4): p(f"s_mov_b32 s{SOFF+j}, {j*4096 + h*65536}")
    def set_soff_K(b):
        for j in range(4): p(f"s_mov_b32 s{SOFF+j}, {(j>>1)*128 + (j&1)*16384 + b*256}")
    def issue(j, regs=DC):
        p(f"s_add_u32 m0, s{RB}, {j*4096}")
        for g in range(4):
            p(f"buffer_load_dwordx4 v{regs+g}, s[{SRD_W}:{SRD_W+3}], s{SOFF+j} offen offset:{g*1024} lds")
    set_soff_T(0)
    for j in range(4): issue(j, DT)
    stamp(13)
    p(f"""v_lshrrev_b32 v{GT+3}, 1, v{GT}
    v_xor_b32 v{GT+3}, v{GT+3}, v{GT+2}
    s_lshl_b32 s{T0}, s{W}, 15
    v_lshlrev_b32 v{GT+4}, 9, v{GT}
    v_add_u32 v{GT+4}, s{T0}, v{GT+4}
    v_lshl_add_u32 v{DK}, v{GT+3}, 4, v{GT+4}
    v_xor_b32 v{GT+3}, 4, v{GT+3}
    v_lshl_add_u32 v{DK+1}, v{GT+3}, 4, v{GT+4}
    v_add_u32 v{DK+2}, {2*3072}, v{DK}
    v_add_u32 v{DK+3}, {3*3072}, v{DK+1}
    v_add_u32 v{DK+1}, {3072}, v{DK+1}""")
    for g in range(4): p(f"v_mov_b32 v{DC+g}, v{DT+g}")
    p(f"""v_and_b32 v{J}, 15, v{LANE}
    v_lshrrev_b32 v{G4}, 4, v{LANE}""")
    p(f"""v_bfe_u32 v{GT}, v{LANE}, 2, 2
    v_and_b32 v{GT+2}, 3, v{LANE}
    v_lshlrev_b32 v{GT+3}, 10, v{G4}
    v_lshl_add_u32 v{GT+3}, v{GT}, 7, v{GT+3}
    v_lshl_add_u32 v{GT+3}, v{GT+2}, 3, v{GT+3}
    v_add_u32 v{GT+3}, s{RB}, v{GT+3}
    v_and_b32 v{GT+4}, 1, v{G4}
    v_lshlrev_b32 v{GT+4}, 1, v{GT+4}
    v_lshrrev_b32 v{GT}, 1, v{GT}
    v_or_b32 v{GT+4}, v{GT+4}, v{GT}""")
    for t in range(4):
        p(f"""v_xor_b32 v{GT}, {t}, v{GT+4}
        v_lshl_add_u32 v{VT+t}, v{GT}, 5, v{GT+3}""")
    p(f"""v_lshrrev_b32 v{GT}, 3, v{J}
    v_and_b32 v{GT+2}, 7, v{J}
    v_lshlrev_b32 v{GT}, 10, v{GT}
    v_lshl_add_u32 v{GT}, v{GT+2}, 7, v{GT}
    v_add_u32 v{GT}, s{RB}, v{GT}
    v_lshrrev_b32 v{GT+3}, 1, v{J}
    v_xor_b32 v{GT+3}, v{GT+3}, v{G4}
    v_lshl_add_u32 v{VK}, v{GT+3}, 4, v{GT}
    v_xor_b32 v{GT+3}, 4, v{GT+3}
    v_lshl_add_u32 v{VK+1}, v{GT+3}, 4, v{GT}""")
    p(f"""v_lshlrev_b32 v{GT}, 9, v{J}
    v_add_u32 v{GT}, {XB}, v{GT}
    v_lshlrev_b32 v{GT+3}, 2, v{G4}
    v_xor_b32 v{GT+3}, v{GT+3}, v{J}""")
    for r in range(4):
        p(f"""v_xor_b32 v{GT+4}, {r}, v{GT+3}
        v_lshl_add_u32 v{VB+r}, v{GT+4}, 4, v{GT}""")
    p(f"""v_lshlrev_b32 v{GT+3}, 4, v{J}
    v_lshl_add_u32 v{VF01}, v{G4}, 8, v{GT+3}
    v_add_u32 v{VF01}, {YB}, v{VF01}
    v_lshlrev_b32 v{GT+3}, 4, v{GT+2}
    v_lshl_add_u32 v{VF2}, v{G4}, 7, v{GT+3}
    v_add_u32 v{VF2}, {YB+2048}, v{VF2}""")
    p(f"""v_lshrrev_b32 v{GT+4}, 1, v{G4}
    v_and_b32 v{GT+5}, 1, v{G4}
    v_lshlrev_b32 v{GT+5}, 3, v{GT+5}
    s_mul_i32 s{T0}, s{W}, 5120
    s_add_u32 s{T0}, s{T0}, {YB}
    v_lshl_add_u32 v{GT+6}, v{J}, 4, v{GT+5}
    v_lshl_add_u32 v{GT+6}, v{GT+4}, 8, v{GT+6}
    v_add_u32 v{VQ01}, s{T0}, v{GT+6}
    v_add_u32 v{GT+6}, v{GT+3}, v{GT+5}
    v_lshl_add_u32 v{GT+6}, v{GT+4}, 7, v{GT+6}
    s_add_u32 s{T0}, s{T0}, 2048
    v_add_u32 v{VQ2}, s{T0}, v{GT+6}""")
    p(f"""s_lshl_b32 s{T0}, s{W}, 7
    v_add_u32 v{GT}, s{T0}, v{GT}
    v_add_u32 v{GT}, v{GT}, v{GT+5}
    s_lshr_b32 s{T0}, s{W}, 1
    s_lshl_b32 s{T0}, s{T0}, 7
    s_add_u32 s{T0}, s{T0}, s{RB}
    v_lshl_add_u32 v{GT+6}, v{J}, 7, v{GT+5}
    v_add_u32 v{GT+6}, s{T0}, v{GT+6}
    v_xor_b32 v{GT+4}, v{GT+4}, v{GT+2}""")
    for t in range(4):
        p(f"""v_xor_b32 v{GT+3}, {2*t}, v{GT+4}
        v_lshl_add_u32 v{VQK+t}, v{GT+3}, 4, v{GT}
        v_lshl_add_u32 v{VOUT+t}, v{GT+3}, 4, v{GT+6}""")
    for i in range(48): p(f"v_mov_b32 v{ACC1+i}, 0")
    for i in range(48): p(f"v_mov_b32 v{ACC2+i}, 0")
    stamp(14)
    p(f"""s_waitcnt lgkmcnt(0)
    s_barrier""")
    stamp(15)
    p(f"""s_cmp_ge_u32 s2, {NPROD}
    s_cbranch_scc1 L_G_nobin
    s_waitcnt vmcnt(22)""")
    stamp(16)
    p(f"""s_call_b64 s[{LINK}:{LINK+1}], L_bin""")
    stamp(17)
    p.label("L_G_nobin")
    if opt.stamps:
        p("s_waitcnt vmcnt(21)")
        stamp(18)
    p("s_waitcnt vmcnt(16)")
    signal(S_X)
    stamp(1)
    semwait(S_X, 4, GT)
    stamp(2)

    def acc(base, t, T): return base + (t*3 + T)*4
    def mfmas(base, A, B):
        for t in range(4):
            for T in range(3):
                a = acc(base, t, T)
                p(f"v_mfma_f32_16x16x32_bf16 {v(a,4)}, {v(A+4*t,4)}, {v(B+4*T,4)}, {v(a,4)}")
    def read_T(j, A):
        for t in range(4):
            p(f"ds_read_b64_tr_b16 {v(A+4*t,2)}, v{VT+t} offset:{j*4096}")
            p(f"ds_read_b64_tr_b16 {v(A+4*t+2,2)}, v{VT+t} offset:{j*4096+512}")
    def read_Bx(r, B):
        for T in range(3): p(f"ds_read_b128 {v(B+4*T,4)}, v{VB+r} offset:{T*8192}")
    def read_Bf(r, B):
        p(f"ds_read_b128 {v(B,4)}, v{VF01} offset:{r*2560}")
        p(f"ds_read_b128 {v(B+4,4)}, v{VF01} offset:{r*2560+1024}")
        p(f"ds_read_b128 {v(B+8,4)}, v{VF2} offset:{r*2560}")
    sets = [(PA, PB), (QA, QB)]
    def bodyT(readB, base, last_cond=False):
        def W(n, nlast):
            p(f"s_waitcnt vmcnt({n})")
            if last_cond and nlast != n:
                L = newl("w")
                p(f"""s_cbranch_scc0 {L}
                s_waitcnt vmcnt({nlast})""")
                p.label(L)
        def I(j):
            if last_cond:
                L = newl("i")
                p(f"s_cbranch_scc1 {L}")
                issue(j)
                p(f"s_cmp_eq_u32 s{IT}, 3")
                p.label(L)
            else:
                issue(j)
        if last_cond: p(f"s_cmp_eq_u32 s{IT}, 3")
        W(12, 12); read_T(0, PA); readB(0, PB)
        W(8, 8); read_T(1, QA); readB(1, QB)
        p("s_waitcnt lgkmcnt(11)"); I(0); mfmas(base, PA, PB)
        W(8, 4); read_T(2, PA); readB(2, PB)
        p("s_waitcnt lgkmcnt(11)"); I(1); mfmas(base, QA, QB)
        W(8, 0); read_T(3, QA); readB(3, QB)
        p("s_waitcnt lgkmcnt(11)"); I(2); mfmas(base, PA, PB)
        p("s_waitcnt lgkmcnt(0)"); I(3); mfmas(base, QA, QB)

    def read_K(pi, kk, A):
        for t in range(4):
            p(f"ds_read_b128 {v(A+4*t,4)}, v{VK+kk} offset:{(2*pi + (t>>1))*4096 + (t&1)*2048}")
    def bodyK(base):
        p("s_waitcnt vmcnt(8)")
        read_K(0, 0, PA); read_Bf(0, PB)
        read_K(0, 1, QA); read_Bf(1, QB)
        p("s_waitcnt lgkmcnt(7)"); mfmas(base, PA, PB)
        p("s_waitcnt lgkmcnt(0)"); issue(0); issue(1)
        p("s_waitcnt vmcnt(8)")
        read_K(1, 0, PA); read_Bf(2, PB)
        mfmas(base, QA, QB)
        read_K(1, 1, QA); read_Bf(3, QB)
        p("s_waitcnt lgkmcnt(7)"); mfmas(base, PA, PB)
        p("s_waitcnt lgkmcnt(0)"); issue(2); issue(3)
        mfmas(base, QA, QB)

    def cvt_write(base, addr_of, mask_T2):
        k = 0
        for T in range(3):
            if T == 2 and mask_T2: p("s_mov_b32 exec_lo, 0x00ff00ff\ns_mov_b32 exec_hi, 0x00ff00ff")
            for t in range(4):
                a = acc(base, t, T); d = GT + 2*(k % 4); k += 1
                p(f"v_cvt_pk_bf16_f32 v{d}, v{a}, v{a+1}")
                p(f"v_cvt_pk_bf16_f32 v{d+1}, v{a+2}, v{a+3}")
                r, im = addr_of(t, T)
                p(f"ds_write_b64 v{r}, {v(d,2)} offset:{im}")
            if T == 2 and mask_T2: p("s_mov_b64 exec, -1")

    set_soff_T(1)
    p(f"s_mov_b32 s{IT}, 0")
    p.label("L_g1")
    bodyT(read_Bx, ACC1)
    p(f"""s_cmp_lg_u32 s{IT}, 0
    s_cbranch_scc1 L_g1_done
    s_mov_b32 s{IT}, 1
    s_mov_b32 s{SRD_W}, s20
    s_mov_b32 s{SRD_W+1}, s21""")
    set_soff_K(0)
    for g in range(4): p(f"v_mov_b32 v{DC+g}, v{DK+g}")
    for r in range(4): p(f"v_add_u32 v{VB+r}, 256, v{VB+r}")
    p("s_branch L_g1")
    p.label("L_g1_done")
    stamp(3)
    cvt_write(ACC1, lambda t, T: (VQ01, (t>>1)*2560 + (t&1)*512 + T*1024) if T < 2 else (VQ2, (t>>1)*2560 + (t&1)*256), True)
    signal(S_Q)
    for i in range(48): p(f"v_mov_b32 v{ACC1+i}, 0")
    set_soff_K(1)
    p(f"s_mov_b32 s{IT}, 0")
    semwait(S_Q, 4, GT)
    stamp(4)
    p.label("L_g2")
    bodyK(ACC2)
    p(f"""s_cmp_lg_u32 s{IT}, 0
    s_cbranch_scc1 L_g2_done
    s_mov_b32 s{IT}, 1
    s_mov_b32 s{SRD_W}, s22
    s_mov_b32 s{SRD_W+1}, s23""")
    set_soff_T(0)
    for g in range(4): p(f"v_mov_b32 v{DC+g}, v{DT+g}")
    p(f"""v_add_u32 v{VF01}, 10240, v{VF01}
    v_add_u32 v{VF2}, 10240, v{VF2}
    s_branch L_g2""")
    p.label("L_g2_done")
    stamp(5)
    cvt_write(ACC2, lambda t, T: (VQK+t, T*8192), True)
    signal(S_QK)
    p(f"""v_subrev_u32 v{VF01}, 10240, v{VF01}
    v_subrev_u32 v{VF2}, 10240, v{VF2}""")
    set_soff_T(1)
    p(f"s_mov_b32 s{IT}, 0")
    semwait(S_AA, 4, GT)
    stamp(6)
    p.label("L_g3")
    bodyT(read_Bf, ACC1, last_cond=True)
    p(f"""s_cbranch_scc1 L_g3_done
    s_add_u32 s{IT}, s{IT}, 1
    s_cmp_eq_u32 s{IT}, 2
    s_cbranch_scc1 L_g3_mid
    v_add_u32 v{VF01}, 10240, v{VF01}
    v_add_u32 v{VF2}, 10240, v{VF2}
    s_cmp_eq_u32 s{IT}, 3
    s_cbranch_scc1 L_g3
    s_mov_b32 s{SRD_W}, s16
    s_mov_b32 s{SRD_W+1}, s17""")
    set_soff_T(0)
    p("s_branch L_g3")
    p.label("L_g3_mid")
    p(f"""v_subrev_u32 v{VF01}, {10240 + YB - XB}, v{VF01}
    v_subrev_u32 v{VF2}, {10240 + YB - XB}, v{VF2}""")
    set_soff_T(1)
    stamp(7)
    semwait(S_AL, 4, GT)
    stamp(8)
    p("s_branch L_g3")
    p.label("L_g3_done")
    stamp(9)
    cvt_write(ACC1, lambda t, T: (VOUT+t, T*2048), False)
    p("s_branch L_final")

    p.label("L_bin")
    p(f"""s_movk_i32 s{T0}, -40
    s_mov_b32 s{T1}, {IMG}
    s_mov_b32 s{T2}, {EMPTY + opt.slot_cap}
    v_lshl_add_u32 v{BT}, s{WV}, 6, v{LANE}
    v_cmp_gt_u32 vcc, 452, v{BT}
    s_mov_b64 s[96:97], vcc""")
    for i in range(5):
        p(f"""v_mul_u32_u24 v{BB+i}, 52429, v{BD+i}
        v_lshrrev_b32 v{BB+i}, 21, v{BB+i}
        v_mad_i32_i24 v{BD+i}, v{BB+i}, s{T0}, v{BD+i}
        v_mul_u32_u24 v{BT}, 26, v{BD+i}
        v_lshrrev_b32 v{BT}, 8, v{BT}
        v_mad_u32_u24 v{BD+i}, v{BT}, 6, v{BD+i}
        v_and_b32 v{BT}, 31, v{BB+i}
        v_lshl_add_u32 v{BR+i}, v{BB+i}, 7, s{T1}
        v_lshl_add_u32 v{BH+i}, v{BT}, 2, v{BR+i}""")
        if i == 4: p("s_mov_b64 exec, s[96:97]")
        p(f"ds_add_rtn_u32 v{BH+i}, v{BH+i}, v{ONE}")
        p(f"v_lshl_or_b32 v{BS+i}, v{BD+i}, 14, v{BS+i}")
    p("s_mov_b64 exec, -1")
    for i in range(5):
        p(f"""s_waitcnt lgkmcnt(4)
        v_add3_u32 v{BT}, v{BB+i}, v{BH+i}, 1
        v_and_b32 v{BT}, 31, v{BT}
        v_lshl_add_u32 v{BT}, v{BT}, 2, v{BR+i}
        v_cmp_gt_u32 vcc, s{T2}, v{BH+i}""")
        if i == 4: p("s_and_b64 exec, vcc, s[96:97]")
        else: p("s_mov_b64 exec, vcc")
        p(f"""ds_write_b32 v{BT}, v{BS+i}
        s_mov_b64 exec, -1""")
    p(f"""s_waitcnt lgkmcnt(0)
    s_barrier
    s_setpc_b64 s[{LINK}:{LINK+1}]""")

    CG16, M0, M1, M2, QKA, FW, DISD, LRD, SRD_ = 4, 5, 6, 7, 8, 11, 12, 13, 14
    AD, IDX, S0, S1, P0, P1, EN, DV = 16, 24, 28, 32, 36, 40, 44, 52
    AT = 62
    ACC = 64
    H = [128, 160, 192, 224]
    SRD_E, SRD_DIS, SRD_WS = 52, 56, 60
    TAGP, TAGC, RHO, MODE, SEL0, SEL1, TL, TR = 64, 65, 66, 67, 68, 69, 70, 71
    MK = 72
    CDIS, CCNT, CSIMG, C512 = 88, 89, 98, 99
    p.label("L_A")
    p(f"""global_load_dword v15, v{ZERO}, s[28:29] sc1
    s_mov_b32 s{SRD_E}, s10
    s_mov_b32 s{SRD_E+1}, s11
    s_mov_b32 s{SRD_E+2}, 160000
    s_mov_b32 s{SRD_E+3}, 0x20000
    s_mul_i32 s{T0}, s2, 640
    s_mul_i32 s{T1}, s{W}, 160
    s_add_u32 s{T0}, s{T0}, s{T1}
    v_lshrrev_b32 v{AT}, 4, v{LANE}
    v_lshlrev_b32 v{AD}, 5, v{AT}
    v_lshlrev_b32 v{AD+1}, 3, v{AT}
    buffer_load_dwordx4 {v(EN,4)}, v{AD}, s[{SRD_E}:{SRD_E+3}], s{T0} offen
    buffer_load_dwordx4 {v(EN+4,4)}, v{AD}, s[{SRD_E}:{SRD_E+3}], s{T0} offen offset:16
    buffer_load_dwordx2 {v(DV,2)}, v{AD+1}, s[{SRD_E}:{SRD_E+3}], s{T0} offen offset:128""")
    srd(SRD_DIS, 14, 20000)
    p(f"""s_add_u32 s{SRD_WS}, s28, {SLOT0}
    s_addc_u32 s{SRD_WS+1}, s29, 0
    s_mov_b32 s{SRD_WS+2}, {256*8192}
    s_mov_b32 s{SRD_WS+3}, 0x20000
    s_mov_b32 s{SEL0}, 0x05040100
    s_mov_b32 s{SEL1}, 0x07060302
    s_mov_b32 s{CDIS}, {DIS}
    s_mov_b32 s{CCNT}, {SEM + CNT}
    s_mov_b32 s{CSIMG}, {SIMG}
    s_movk_i32 s{C512}, 512
    s_mov_b32 s{MODE}, 0
    s_mov_b32 s{TL}, 0
    s_mov_b32 s{TR}, 0""")
    p(f"""v_and_b32 v{AT+1}, 15, v{LANE}
    v_lshlrev_b32 v{CG16}, 4, v{AT+1}
    v_lshlrev_b32 v{P0}, 1, v{AT}
    v_cmp_eq_u32 vcc, v{P0}, v{AT+1}
    v_add_u32 v{P0+1}, 1, v{P0}
    v_cmp_eq_u32 s[72:73], v{P0+1}, v{AT+1}
    v_lshrrev_b32 v{P0+2}, 1, v{AT}
    v_add_u32 v{P0+2}, 8, v{P0+2}
    v_cmp_eq_u32 s[74:75], v{P0+2}, v{AT+1}
    v_cndmask_b32_e64 v{M0}, 0, -1, vcc
    v_cndmask_b32_e64 v{M1}, 0, -1, s[72:73]
    v_cndmask_b32_e64 v{M2}, 0, -1, s[74:75]
    s_mul_i32 s{T0}, s{W}, 10""")
    for e in range(3):
        p(f"""v_add_u32 v{P1}, s{T0}, v{P0+e}
        v_and_b32 v{P1+1}, 7, v{P1}
        v_xor_b32 v{P1+1}, v{P1+1}, v{AT+1}
        v_lshlrev_b32 v{P1+1}, 4, v{P1+1}
        v_lshl_add_u32 v{P1+1}, v{P1}, 9, v{P1+1}
        v_add_u32 v{QKA+e}, {XB}, v{P1+1}""")
    p(f"""v_add_u32 v{P1}, s{T0}, v{AT+1}
    v_and_b32 v{P1+1}, 15, v{P1}
    v_lshrrev_b32 v{P1+2}, 4, v{P1}
    v_lshlrev_b32 v{P1+2}, 10, v{P1+2}
    v_lshl_add_u32 v{P1+2}, v{P1+1}, 4, v{P1+2}
    v_lshl_add_u32 v{P1+3}, v{AT}, 8, v{P1+2}
    v_lshl_add_u32 v{P1+2}, v{AT}, 7, v{P1+2}
    v_cmp_gt_u32 vcc, 32, v{P1}
    s_mul_i32 s{T1}, s2, 40
    v_add_u32 v{DISD}, s{T1}, v{P1}
    v_cndmask_b32_e64 v{FW}, v{P1+2}, v{P1+3}, vcc
    v_add_u32 v{FW}, {YB}, v{FW}
    v_lshl_add_u32 v{DISD}, v{DISD}, 1, s{CDIS}""")
    stamp(14)
    p(f"""s_waitcnt lgkmcnt(0)
    s_barrier""")
    stamp(15)
    p(f"""s_cmp_ge_u32 s2, {NPROD}
    s_cbranch_scc1 L_A_nobin
    s_waitcnt vmcnt(4)""")
    stamp(16)
    p(f"""s_call_b64 s[{LINK}:{LINK+1}], L_bin""")
    stamp(17)
    p(f"""v_lshl_add_u32 v{P0}, s{W}, 6, v{LANE}
    v_lshlrev_b32 v{P0+1}, 4, v{P0}
    v_add_u32 v{P0+1}, {IMG}, v{P0+1}""")
    for k in range(8): p(f"ds_read_b128 {v(ACC+4*k,4)}, v{P0+1} offset:{k*4096}")
    p(f"""v_lshrrev_b32 v{P0+2}, 3, v{P0}
    v_and_b32 v{P0+3}, 7, v{P0}
    v_lshlrev_b32 v{P0+2}, 13, v{P0+2}
    v_lshlrev_b32 v{P0+3}, 4, v{P0+3}
    s_lshl_b32 s{T0}, s2, 7
    v_add3_u32 v{P0+2}, v{P0+2}, v{P0+3}, s{T0}
    s_waitcnt vmcnt(0)
    v_readfirstlane_b32 s{TAGP}, v15
    s_lshr_b32 s{TAGP}, s{TAGP}, 20
    s_add_u32 s{TAGP}, s{TAGP}, {TAGINC}
    s_lshl_b32 s{TAGP}, s{TAGP}, 20
    s_mov_b32 s{T0}, 0""")
    for k in range(8):
        p(f"s_waitcnt lgkmcnt({7-k})")
        for d in range(4): p(f"v_or_b32 v{ACC+4*k+d}, s{TAGP}, v{ACC+4*k+d}")
        p(f"buffer_store_dwordx4 {v(ACC+4*k,4)}, v{P0+2}, s[{SRD_WS}:{SRD_WS+3}], s{T0} offen sc1")
        if k < 7: p(f"s_add_u32 s{T0}, s{T0}, {32*8192}")
    signal(S_CPY)
    stamp(1)
    p("s_branch L_A_rows")
    p.label("L_A_nobin")
    p(f"""s_waitcnt vmcnt(0)
    v_readfirstlane_b32 s{TAGP}, v15
    s_lshr_b32 s{TAGP}, s{TAGP}, 20
    s_add_u32 s{TAGP}, s{TAGP}, {TAGINC}
    s_lshl_b32 s{TAGP}, s{TAGP}, 20""")
    p.label("L_A_rows")
    stamp(18)
    for i in range(8):
        p(f"""v_lshl_add_u32 v{AD+i}, v{EN+i}, 9, v{CG16}
        buffer_load_dwordx4 {v(H[0]+4*i,4)}, v{AD+i}, s[{SRD_X}:{SRD_X+3}], 0 offen
        buffer_load_dwordx4 {v(H[1]+4*i,4)}, v{AD+i}, s[{SRD_X}:{SRD_X+3}], 0 offen offset:256""")
    for i in range(2):
        p(f"""v_lshl_add_u32 v{IDX+i}, v{DV+i}, 9, v{CG16}
        buffer_load_dwordx4 {v(H[2]+8*i,4)}, v{IDX+i}, s[{SRD_X}:{SRD_X+3}], 0 offen
        buffer_load_dwordx4 {v(H[2]+8*i+4,4)}, v{IDX+i}, s[{SRD_X}:{SRD_X+3}], 0 offen offset:256""")
    p(f"global_load_dword v15, v{ZERO}, s[26:27] sc1")
    stamp(2)
    p(f"""s_cmp_ge_u32 s2, {NPROD}
    s_cbranch_scc1 L_A_nocpy""")
    semwait(S_CPY, 4, AT)
    p.label("L_A_nocpy")
    p(f"""v_lshlrev_b32 v{P0}, 4, v{LANE}
    s_mul_i32 s{T0}, s{W}, 5120
    s_add_u32 s{T1}, s{T0}, {DIS}""")
    for k in range(5):
        p(f"""s_add_u32 m0, s{T1}, {k*1024}
        s_nop 0
        buffer_load_dwordx4 v{P0}, s[{SRD_DIS}:{SRD_DIS+3}], s{T0} offen lds""")
        if k < 4: p(f"s_add_u32 s{T0}, s{T0}, 1024")
    p(f"""v_lshrrev_b32 v{AT}, 4, v{LANE}
    s_lshl_b32 s{T0}, s{W}, 8
    s_add_u32 s{T0}, s{T0}, {SIMG}
    v_lshl_add_u32 v{SRD_}, v{AT}, 10, v{CG16}
    v_add_u32 v{SRD_}, s{T0}, v{SRD_}
    v_or_b32 v{LRD}, 240, v{SRD_}""")
    p(f"s_call_b64 s[{LINK}:{LINK+1}], L_init")
    p(f"""v_mov_b32 v{P1+1}, 0
    v_mov_b32 v{P1+3}, 0
    v_mov_b32 v{P0+1}, 0
    v_mov_b32 v{P0+3}, 0
    v_mov_b32 v{S1+1}, 0
    s_waitcnt vmcnt(0)
    v_readfirstlane_b32 s{T0}, v15""")
    signal(S_I)
    p(f"""s_bitcmp1_b32 s{T0}, 16
    s_cbranch_scc0 L_A_tagok
    s_add_u32 s{T0}, s{T0}, {TAGINC}
    s_lshl_b32 s{TAGP}, s{T0}, 20""")
    p.label("L_A_tagok")
    p(f"""s_lshl_b32 s{T0}, s{W}, 11
    s_lshl_b32 s{T1}, s2, 13
    s_add_u32 s{T0}, s{T0}, s{T1}
    v_lshlrev_b32 v15, 4, v{LANE}
    v_add_u32 v15, s{T0}, v15""")
    stamp(3)
    semwait(S_QK, 4, AT)
    stamp(4)
    p(f"""buffer_load_dwordx4 {v(EN,4)}, v15, s[{SRD_WS}:{SRD_WS+3}], 0 offen sc1
    buffer_load_dwordx4 {v(EN+4,4)}, v15, s[{SRD_WS}:{SRD_WS+3}], 0 offen offset:1024 sc1""")
    QK0 = H[3]
    for e in range(3):
        for h in range(2):
            p(f"ds_read_b128 {v(QK0+8*e+4*h,4)}, v{QKA+e} offset:{h*256}")
    def raw(i, h, d): return (H[h] + 4*i + d) if i < 8 else (H[2] + 8*(i-8) + 4*h + d)
    for e, slots in ((0, range(0, 4)), (1, range(4, 8)), (2, range(8, 10))):
        p(f"s_waitcnt lgkmcnt({4-2*e})")
        for h in range(2):
            for d in range(4):
                for i in slots:
                    q = QK0 + 8*e + 4*h + d
                    if h == 0 and d == 0: p(f"v_dot2_f32_bf16 v{DV+i}, v{raw(i,h,d)}, v{q}, 0")
                    else: p(f"v_dot2c_f32_bf16 v{DV+i}, v{raw(i,h,d)}, v{q}")
    for rot in (8, 4, 2, 1):
        for i in range(10):
            p(f"v_add_f32_dpp v{DV+i}, v{DV+i}, v{DV+i} row_ror:{rot} row_mask:0xf bank_mask:0xf")
    p(f"s_mov_b32 s{T0}, 0x3db8aa3b")
    for i in range(10): p(f"v_mul_f32 v{DV+i}, s{T0}, v{DV+i}")
    for i in range(10): p(f"v_exp_f32 v{DV+i}, v{DV+i}")
    p(f"""s_mov_b32 s{T0}, 0x3089705f
    v_add_f32 v{AT}, v{DV+8}, v{DV+9}
    v_add_f32 v{S0}, v{DV}, v{DV+1}
    v_add_f32 v{S0+1}, v{DV+2}, v{DV+3}
    v_mov_b32 v{AT+1}, v{AT}
    v_add_f32 v{S0+2}, v{DV+4}, v{DV+5}
    v_add_f32 v{S0+3}, v{DV+6}, v{DV+7}
    v_permlane16_swap_b32 v{AT}, v{AT+1}
    v_add_f32 v{S0}, v{S0}, v{S0+1}""")
    p(f"""v_add_f32 v{S0+2}, v{S0+2}, v{S0+3}
    v_add_f32 v{AT}, v{AT}, v{AT+1}
    v_add_f32 v{S0}, s{T0}, v{S0}
    v_add_f32 v{S0+2}, s{T0}, v{S0+2}
    v_add_f32 v{AT}, s{T0}, v{AT}
    v_rcp_f32 v{S0}, v{S0}
    v_rcp_f32 v{S0+2}, v{S0+2}
    v_rcp_f32 v{AT}, v{AT}""")
    for i in range(10):
        r = S0 if i < 4 else (S0+2 if i < 8 else AT)
        p(f"v_mul_f32 v{DV+i}, v{r}, v{DV+i}")
    for k in range(4):
        p(f"v_cvt_pk_bf16_f32 v{S0+k}, v{DV+2*k}, v{DV+2*k+1}")
    p(f"v_cvt_pk_bf16_f32 v{S1}, v{DV+8}, v{DV+9}")
    for k in range(4): p(f"v_and_b32 v{S0+k}, v{M0 if k < 2 else M1}, v{S0+k}")
    p(f"v_and_b32 v{S1}, v{M2}, v{S1}")
    stamp(5)
    pp = [P0, P0+2, P1, P1+2]
    def perm1(n):
        h, t = n >> 3, n & 7
        p(f"v_perm_b32 v{pp[n % 4]}, v{raw(9,h,t>>1)}, v{raw(8,h,t>>1)}, s{SEL1 if t&1 else SEL0}")
    perm1(0); perm1(1)
    for n in range(16):
        if n + 2 < 16: perm1(n+2)
        a = ACC + 4*n
        p(f"v_mfma_f32_16x16x16_bf16 {v(a,4)}, {v(pp[n % 4],2)}, {v(S1,2)}, 0")
    p(f"""s_mov_b32 s{RHO}, 0
    s_call_b64 s[{LINK}:{LINK+1}], L_agg
    s_call_b64 s[{LINK}:{LINK+1}], L_wout""")
    signal(S_AA)
    stamp(6)
    p(f"v_add_u32 v{FW}, {(XB - YB) & 0xffffffff}, v{FW}")
    p.label("L_poll")
    p("s_waitcnt vmcnt(0)")
    for k in range(8): p(f"v_xor_b32 v{EN+k}, s{TAGP}, v{EN+k}")
    p(f"""v_max3_u32 v{AT}, v{EN}, v{EN+1}, v{EN+2}
    v_max3_u32 v{AT+1}, v{EN+3}, v{EN+4}, v{EN+5}
    v_max3_u32 v{AT}, v{AT}, v{EN+6}, v{EN+7}
    v_max_u32 v{AT}, v{AT}, v{AT+1}
    v_cmp_lt_u32 vcc, 0xfffff, v{AT}
    s_cmp_eq_u64 vcc, 0
    s_cbranch_scc1 L_got
    s_add_u32 s93, s93, 16
    s_cmp_ge_u32 s93, {SPIN_MAX}
    s_cbranch_scc1 L_end
    s_sleep 1
    buffer_load_dwordx4 {v(EN,4)}, v15, s[{SRD_WS}:{SRD_WS+3}], 0 offen sc1
    buffer_load_dwordx4 {v(EN+4,4)}, v15, s[{SRD_WS}:{SRD_WS+3}], 0 offen offset:1024 sc1
    s_branch L_poll""")
    p.label("L_got")
    stamp(7)
    semwait(S_I, 4, AT+1)
    p(f"""ds_read_u16 v{DISD}, v{DISD}
    v_mov_b32 v{DV+9}, 0
    v_cmp_lt_u32 vcc, {EMPTY + opt.slot_cap}, v{AT}""")
    if opt.force_slow: p("s_mov_b64 vcc, -1")
    p(f"""s_cmp_lg_u64 vcc, 0
    s_cselect_b32 s{T2}, 0x10000, 0""")
    p.label("L_fill")
    FS, F0, FL, FP, FWt = H[2], H[2]+8, H[2]+16, H[2]+24, H[3]
    p(f"s_mov_b32 s{T0}, {EMPTY}")
    for k in range(8):
        p(f"""v_and_b32 v{FS+k}, 0x3fff, v{EN+k}
        v_cmp_gt_u32 s[{MK+2*k}:{MK+2*k+1}], s{T0}, v{EN+k}
        v_lshl_add_u32 v{FWt+k}, v{FS+k}, 1, s{CDIS}
        v_lshrrev_b32 v{FP+k}, 18, v{EN+k}
        v_lshl_add_u32 v{FP+k}, v{FP+k}, 2, s{CCNT}
        v_lshrrev_b32 v{F0+k}, 10, v{EN+k}
        s_mov_b64 exec, s[{MK+2*k}:{MK+2*k+1}]
        ds_read_u16 v{FWt+k}, v{FWt+k}
        ds_add_rtn_u32 v{FP+k}, v{FP+k}, v{ONE}
        s_mov_b64 exec, -1
        v_and_b32 v{F0+k}, 0x3f0, v{F0+k}
        v_or_b32 v{FL+k}, 240, v{F0+k}""")
    for k in range(8):
        p(f"""s_mov_b64 exec, s[{MK+2*k}:{MK+2*k+1}]
        s_waitcnt lgkmcnt(14)
        v_max_u32 v{DV+9}, v{DV+9}, v{FP+k}
        v_min_u32 v{FP+k}, 255, v{FP+k}
        v_lshlrev_b32 v{AT}, 1, v{FP+k}
        v_lshrrev_b32 v{FP+k}, 3, v{FP+k}
        v_and_or_b32 v{AT}, v{AT}, 14, s{CSIMG}
        v_lshl_add_u32 v{AT}, v{FP+k}, 10, v{AT}
        v_add_u32 v{F0+k}, v{F0+k}, v{AT}
        v_add_u32 v{FL+k}, v{FL+k}, v{AT}
        ds_write_b16 v{F0+k}, v{FWt+k}
        ds_write_b16 v{FL+k}, v{FS+k}""")
    p(f"""s_mov_b64 exec, -1
    v_cmp_lt_u32 vcc, 255, v{DV+9}
    s_or_b32 s{T1}, s{T2}, 0x10000
    s_cmp_lg_u64 vcc, 0
    s_cselect_b32 s{T2}, s{T1}, s{T2}
    s_add_u32 s{T2}, s{T2}, 1
    v_mov_b32 v{AT}, s{T2}
    s_add_u32 s{TL}, s{TL}, 4""")
    signal(S_L, AT)
    semwait(S_L, f"s{TL}", AT, mask=0xffff, keep=T1)
    p(f"""s_lshr_b32 s{T1}, s{T1}, 16
    s_cmp_eq_u32 s{MODE}, 0
    s_cselect_b32 s{T1}, s{T1}, 0
    s_cmp_lg_u32 s{T1}, 0
    s_cbranch_scc1 L_slow_enter
    s_lshl_b32 s{T0}, s{W}, 2
    v_mov_b32 v{AT}, s{T0}
    v_add_u32 v{AT}, s{CCNT}, v{AT}
    ds_read_b32 v{AT}, v{AT}
    ds_read_b128 {v(IDX,4)}, v{LRD}
    ds_read_b128 {v(P0,4)}, v{LRD} offset:4096
    ds_read_b128 {v(S0,4)}, v{SRD_}
    ds_read_b128 {v(S1,4)}, v{SRD_} offset:4096
    s_waitcnt lgkmcnt(4)
    v_readfirstlane_b32 s{RHO}, v{AT}
    s_add_u32 s{RHO}, s{RHO}, 31
    s_lshr_b32 s{RHO}, s{RHO}, 5
    s_cmp_eq_u32 s{RHO}, 0
    s_cbranch_scc1 L_round_done
    s_sub_u32 s{RHO}, s{RHO}, 1
    s_waitcnt lgkmcnt(3)""")
    def addrs(src):
        for i in range(8):
            sel = " op_sel:[1,0,0,0]" if i & 1 else ""
            p(f"v_mad_u32_u16 v{AD+i}, v{src + (i>>1)}, s{C512}, v{CG16}{sel}")
    def loads(u, h):
        for i in range(8):
            p(f"buffer_load_dwordx4 {v(H[u]+4*i,4)}, v{AD+i}, s[{SRD_X}:{SRD_X+3}], 0 offen" + (" offset:256" if h else ""))
    addrs(IDX); loads(0, 0); loads(1, 1)
    p(f"""s_cmp_eq_u32 s{RHO}, 0
    s_cbranch_scc1 L_pro_done
    s_waitcnt lgkmcnt(2)""")
    addrs(P0); loads(2, 0); loads(3, 1)
    p.label("L_pro_done")
    p(f"""ds_read_b128 {v(IDX,4)}, v{LRD} offset:8192
    v_add_u32 v{LRD}, {3*4096}, v{LRD}
    v_add_u32 v{SRD_}, {2*4096}, v{SRD_}
    s_cmp_lg_u32 s{MODE}, 0
    s_cbranch_scc1 L_nozero""")
    for i in range(64): p(f"v_mov_b32 v{ACC+i}, 0")
    p.label("L_nozero")
    stamp(8)
    p(f"s_call_b64 s[{LINK}:{LINK+1}], L_agg")
    p("s_branch L_round_end")
    p.label("L_round_done")
    p(f"""s_waitcnt lgkmcnt(0)
    s_cmp_lg_u32 s{MODE}, 0
    s_cbranch_scc1 L_round_end""")
    for i in range(64): p(f"v_mov_b32 v{ACC+i}, 0")
    p.label("L_round_end")
    p(f"""s_cmp_lg_u32 s{MODE}, 0
    s_cbranch_scc1 L_slow_next""")
    p.label("L_A_tail")
    stamp(9)
    p(f"""s_waitcnt lgkmcnt(0)
    v_lshlrev_b32 v{DISD}, 16, v{DISD}
    s_nop 4""")
    for i in range(32):
        p(f"v_pk_mul_f32 {v(ACC+2*i,2)}, {v(ACC+2*i,2)}, {v(DISD,2)} op_sel_hi:[1,0]")
    p(f"s_call_b64 s[{LINK}:{LINK+1}], L_wout")
    signal(S_AL)
    stamp(10)
    p("s_branch L_final")

    p.label("L_slow_enter")
    for i in range(64): p(f"v_mov_b32 v{ACC+i}, 0")
    srd(SRD_SRC, 6, 640000)
    srd(SRD_DST, 8, 640000)
    p(f"s_mov_b32 s{MODE}, 0")
    p.label("L_slow_next")
    p(f"""s_cmp_eq_u32 s{MODE}, 625
    s_cbranch_scc1 L_A_tail
    s_lshl_b32 s{T0}, s{MODE}, 10
    s_add_u32 s{MODE}, s{MODE}, 1
    v_lshl_add_u32 v{AT}, s{W}, 6, v{LANE}
    v_lshlrev_b32 v{AT}, 2, v{AT}
    buffer_load_dword v{EN}, v{AT}, s[{SRD_SRC}:{SRD_SRC+3}], s{T0} offen
    buffer_load_dword v{EN+1}, v{AT}, s[{SRD_DST}:{SRD_DST+3}], s{T0} offen
    v_lshrrev_b32 v{AT}, 4, v{LANE}
    s_lshl_b32 s{T0}, s{W}, 8
    s_add_u32 s{T0}, s{T0}, {SIMG}
    v_lshl_add_u32 v{SRD_}, v{AT}, 10, v{CG16}
    v_add_u32 v{SRD_}, s{T0}, v{SRD_}
    v_or_b32 v{LRD}, 240, v{SRD_}
    s_waitcnt lgkmcnt(0)
    s_call_b64 s[{LINK}:{LINK+1}], L_init
    s_add_u32 s{TR}, s{TR}, 4""")
    signal(S_R)
    semwait(S_R, f"s{TR}", AT)
    p(f"""s_mul_i32 s{T0}, s2, 40
    s_waitcnt vmcnt(0)
    v_subrev_u32 v{EN+1}, s{T0}, v{EN+1}
    v_cmp_gt_u32 vcc, 40, v{EN+1}
    v_mul_u32_u24 v{AT}, 26, v{EN+1}
    v_lshrrev_b32 v{AT}, 8, v{AT}
    v_mad_u32_u24 v{AT}, v{AT}, 6, v{EN+1}
    v_lshl_or_b32 v{AT}, v{AT}, 14, v{EN}
    v_mov_b32 v{EN+1}, {EMPTY}
    v_cndmask_b32_e64 v{EN}, v{EN+1}, v{AT}, vcc""")
    for k in range(2, 8): p(f"v_mov_b32 v{EN+k}, {EMPTY}")
    p(f"""v_mov_b32 v{DV+9}, 0
    s_mov_b32 s{T2}, 0
    s_branch L_fill""")

    p.label("L_init")
    p(f"""v_and_b32 v{AT}, 15, v{LANE}
    v_cmp_eq_u32 vcc, 15, v{AT}
    s_lshl_b32 s{T0}, s{W}, 2
    s_add_u32 s{T0}, s{T0}, s{CCNT}
    v_mov_b32 v{AT+1}, s{T0}
    v_cndmask_b32_e64 v{S0}, 0, -1, vcc
    v_cndmask_b32_e64 v{S0+1}, 0, -1, vcc
    v_cndmask_b32_e64 v{S0+2}, 0, -1, vcc
    v_cndmask_b32_e64 v{S0+3}, 0, -1, vcc
    ds_write_b32 v{AT+1}, v{ZERO}""")
    for k in range(8): p(f"ds_write_b128 v{SRD_}, {v(S0,4)} offset:{k*4096}")
    p(f"s_setpc_b64 s[{LINK}:{LINK+1}]")

    p.label("L_wout")
    p("""s_nop 7
    s_mov_b32 exec_lo, 0x03ff03ff
    s_mov_b32 exec_hi, 0x03ff03ff""")
    for h in range(2):
        for r in range(4):
            d = P0 if r % 2 == 0 else P1
            for k in range(4):
                p(f"v_cvt_pk_bf16_f32 v{d+k}, v{ACC+(8*h+2*k)*4+r}, v{ACC+(8*h+2*k+1)*4+r}")
            p(f"ds_write_b128 v{FW}, {v(d,4)} offset:{(4*h+r)*2560}")
    p(f"""s_mov_b64 exec, -1
    s_setpc_b64 s[{LINK}:{LINK+1}]""")

    def perms(u, t, P):
        for q in range(4):
            p(f"v_perm_b32 v{P+q}, v{H[u]+4*(2*q+1)+(t>>1)}, v{H[u]+4*(2*q)+(t>>1)}, s{SEL1 if t&1 else SEL0}")
    def CB(u, S):
        h = u & 1
        perms(u, 0, P0)
        for t in range(8):
            if t < 7: perms(u, t+1, P1 if t % 2 == 0 else P0)
            a = ACC + (8*h + t)*4
            p(f"v_mfma_f32_16x16x32_bf16 {v(a,4)}, {v(P0 if t % 2 == 0 else P1,4)}, {v(S,4)}, {v(a,4)}")
    p.label("L_agg")
    for pi in range(2):
        S = S0 if pi == 0 else S1
        L1, L2, L3, L4, L5 = newl("a"), newl("a"), newl("a"), newl("a"), newl("a")
        p(f"""s_cmp_eq_u32 s{RHO}, 0
        s_waitcnt vmcnt(24) lgkmcnt(1)
        s_cbranch_scc0 {L1}
        s_waitcnt vmcnt(8)""")
        p.label(L1)
        CB(2*pi, S)
        p(f"""s_cmp_lt_u32 s{RHO}, 2
        s_cbranch_scc1 {L2}
        s_waitcnt lgkmcnt(0)""")
        addrs(IDX); loads(2*pi, 0)
        p(f"""ds_read_b128 {v(IDX,4)}, v{LRD}
        v_add_u32 v{LRD}, 4096, v{LRD}
        s_waitcnt vmcnt(24)
        s_branch {L3}""")
        p.label(L2)
        p(f"""s_cmp_eq_u32 s{RHO}, 0
        s_waitcnt vmcnt(16)
        s_cbranch_scc0 {L3}
        s_waitcnt vmcnt(0)""")
        p.label(L3)
        CB(2*pi+1, S)
        p(f"""s_cmp_lt_u32 s{RHO}, 2
        s_cbranch_scc1 {L4}""")
        loads(2*pi+1, 1)
        p(f"""ds_read_b128 {v(S,4)}, v{SRD_}
        v_add_u32 v{SRD_}, 4096, v{SRD_}""")
        p.label(L4)
        p(f"""s_cmp_eq_u32 s{RHO}, 0
        s_cbranch_scc1 L_agg_ret
        s_sub_u32 s{RHO}, s{RHO}, 1""")
        if pi == 1: p("s_branch L_agg")
    p.label("L_agg_ret")
    p(f"s_setpc_b64 s[{LINK}:{LINK+1}]")

    p.label("L_final")
    p(f"""v_lshrrev_b32 v4, 5, v{LANE}
    s_lshl_b32 s{T0}, s{WV}, 1
    v_add_u32 v4, s{T0}, v4
    v_and_b32 v5, 31, v{LANE}
    v_lshrrev_b32 v6, 3, v5
    v_xor_b32 v7, v4, v5
    v_and_b32 v7, 7, v7
    v_lshlrev_b32 v7, 4, v7
    v_lshl_add_u32 v7, v4, 7, v7
    v_lshl_add_u32 v7, v6, 14, v7
    v_lshrrev_b32 v6, 1, v6
    v_lshl_add_u32 v7, v6, 7, v7
    v_lshlrev_b32 v5, 4, v5
    v_lshl_add_u32 v5, v4, 9, v5
    s_mul_i32 s{T0}, s2, 20480
    s_add_u32 s{T1}, s{T0}, 8192
    s_add_u32 s{T2}, s{T0}, 16384
    s_waitcnt lgkmcnt(0)
    s_barrier
    ds_read_b128 v[8:11], v7 offset:{RING}
    ds_read_b128 v[12:15], v7 offset:{RING+2048}
    s_cmp_ge_u32 s{WV}, 4
    s_cbranch_scc1 L_fin2
    ds_read_b128 v[16:19], v7 offset:{RING+4096}
    s_waitcnt lgkmcnt(0)
    buffer_store_dwordx4 v[16:19], v5, s[{SRD_OUT}:{SRD_OUT+3}], s{T2} offen""")
    p.label("L_fin2")
    p(f"""s_waitcnt lgkmcnt(0)
    buffer_store_dwordx4 v[8:11], v5, s[{SRD_OUT}:{SRD_OUT+3}], s{T0} offen
    buffer_store_dwordx4 v[12:15], v5, s[{SRD_OUT}:{SRD_OUT+3}], s{T1} offen""")
    stamp(11)
    stamp_out()
    p("s_endpgm")

    p.label("L_upd")
    p(f"""s_cmp_lg_u32 s{WV}, 0
    s_cbranch_scc1 L_end
    s_waitcnt lgkmcnt(0)
    global_load_dword v15, v{ZERO}, s[28:29] sc1
    s_add_u32 s60, s28, {SLOT0 + NWG*8192}
    s_addc_u32 s61, s29, 0
    s_mov_b32 s62, 8192
    s_mov_b32 s63, 0x20000
    v_lshlrev_b32 v4, 4, v{LANE}
    s_movk_i32 s{T1}, 4096
    s_waitcnt vmcnt(0)
    v_readfirstlane_b32 s64, v15
    s_lshr_b32 s64, s64, 20
    s_add_u32 s65, s64, {TAGINC}
    s_lshl_b32 s65, s65, 20""")
    p.label("L_upd_poll")
    for k in range(8):
        p(f"buffer_load_dwordx4 {v(16+4*k,4)}, v4, s[60:63], {'0' if k < 4 else 's%d' % T1} offen offset:{(k&3)*1024} sc1")
    p("s_waitcnt vmcnt(0)")
    for k in range(32): p(f"v_xor_b32 v{16+k}, s65, v{16+k}")
    for k in range(1, 31, 2): p(f"v_max3_u32 v16, v16, v{16+k}, v{17+k}")
    p(f"""v_max_u32 v16, v16, v47
    v_cmp_lt_u32 vcc, 0xfffff, v16
    s_cmp_eq_u64 vcc, 0
    s_cbranch_scc1 L_upd_go
    s_add_u32 s93, s93, 16
    s_cmp_ge_u32 s93, {SPIN_MAX}
    s_cbranch_scc1 L_end
    s_sleep 8
    s_branch L_upd_poll""")
    p.label("L_upd_go")
    p(f"""s_or_b32 s64, s64, 0x10000
    v_mov_b32 v5, s64
    v_mov_b32 v6, s65
    s_mov_b64 exec, 1
    global_store_dword v{ZERO}, v5, s[26:27] sc0 sc1
    s_waitcnt vmcnt(0)
    global_store_dword v{ZERO}, v6, s[28:29] sc0 sc1""")
    p.label("L_end")
    p("s_endpgm")

    a, b = p.finish()
    hdr = open(os.path.join(os.path.dirname(os.path.abspath(__file__)), "header.txt")).read()
    out = hdr + f"; @launch grid=({NWG+1},1,1) block=(512,1,1) lds={LDS_TOTAL}\n"
    out += f""".amdgcn_target "amdgcn-amd-amdhsa--gfx950"
.text
.globl {KNAME}
.p2align 8
.type {KNAME},@function
{KNAME}:
"""
    out += p.text()
    out += f""".section .rodata,"a"
.p2align 6
.amdhsa_kernel {KNAME}
  .amdhsa_next_free_vgpr 256
  .amdhsa_next_free_sgpr 102
  .amdhsa_accum_offset 256
  .amdhsa_group_segment_fixed_size 0
  .amdhsa_kernarg_size 104
  .amdhsa_user_sgpr_count 2
  .amdhsa_user_sgpr_kernarg_segment_ptr 1
  .amdhsa_system_sgpr_workgroup_id_x 1
  .amdhsa_float_denorm_mode_32 3
.end_amdhsa_kernel
"""
    sys.stderr.write(f"auto nops: linear {a}, edges {b}; {sum(1 for i in p.ins if i.states)} instructions\n")
    return out

if __name__ == "__main__":
    import argparse
    ap = argparse.ArgumentParser()
    ap.add_argument("-o", default="gather_scatter__hybrid_graph_tf_exphormer__graph.s")
    ap.add_argument("--stamps", action="store_true")
    ap.add_argument("--force-slow", action="store_true")
    ap.add_argument("--slot-cap", type=int, default=31)
    a = ap.parse_args()
    Opt.stamps = a.stamps; Opt.force_slow = a.force_slow; Opt.slot_cap = a.slot_cap
    open(a.o, "w").write(build())
```

```python
import sys, os
sys.path.insert(0, os.path.dirname(os.path.abspath(__file__)))
from asmlib import Prog

KNAME = "gather_scatter__hybrid_graph_tf_exphormer__graph_kernel"

SEM = 0
RING = 256
XB = RING + 65536
YB = XB + 20480
ZB = YB + 20480
IMG = ZB
DIS = ZB
SIMG = ZB + 20480
LDS_TOTAL = SIMG + 32768
S_X, S_Q, S_QK, S_AA, S_AL, S_CPY, S_I, S_L, CNT, S_R = 0, 4, 8, 12, 16, 20, 24, 28, 32, 48
assert IMG + 32768 <= LDS_TOTAL and LDS_TOTAL <= 163840

NWG = 250
NPROD = 64
SLOT0 = 65536
STAMP0 = 8 << 20
EMPTY = 0xFC000
TAGINC = 0x2C5
SPIN_MAX = 1 << 21

def v(n, c=1): return f"v{n}" if c == 1 else f"v[{n}:{n+c-1}]"
def s(n, c=1): return f"s{n}" if c == 1 else f"s[{n}:{n+c-1}]"

class Opt:
    stamps = False
    dbgstamps = False
    force_slow = False
    slot_cap = 31

def build(opt=Opt):
    p = Prog()
    lbl = [0]
    def newl(n):
        lbl[0] += 1
        return f"L_{n}_{lbl[0]}"

    TID, LANE, ZERO, ONE = 0, 1, 2, 3
    SEMA = ZERO
    WV, LINK, W = 3, 30, 32
    T0, T1, T2 = 33, 34, 35
    SRD_X, SRD_OUT, SRD_SRC, SRD_DST = 36, 40, 44, 48
    STAMP = 90

    nstamp = [0]
    def stamp(slot):
        if not opt.stamps: return
        p(f"""s_memrealtime s[90:91]
        s_waitcnt lgkmcnt(0)
        v_writelane_b32 v0, s90, {slot}""")
    def stamp_out():
        if not opt.stamps: return
        p(f"""s_lshl_b32 s92, s2, 3
        s_add_u32 s92, s92, s{WV}
        s_lshl_b32 s92, s92, 7
        s_add_u32 s92, s92, {STAMP0}
        v_lshlrev_b32 v20, 2, v{LANE}
        v_add_u32 v20, s92, v20
        s_mov_b32 exec_hi, 0
        global_store_dword v20, v0, s[28:29]
        s_mov_b64 exec, -1""")
        if opt.dbgstamps:
            L = newl("dbg")
            p(f"""s_and_b32 s90, s{WV}, 3
            s_cmp_lg_u32 s90, 0
            s_cbranch_scc1 {L}
            s_and_b32 s90, s2, 127
            s_cmp_lg_u32 s90, 100
            s_cbranch_scc1 {L}
            v_readlane_b32 s90, v0, 0
            s_nop 3
            v_subrev_u32 v21, s90, v0
            v_lshrrev_b32 v21, 4, v21
            v_min_u32 v21, 255, v21
            s_lshr_b32 s90, s{WV}, 2
            s_mul_i32 s90, s90, 12
            s_add_u32 s90, s90, 4
            s_lshr_b32 s91, s2, 7
            s_mul_i32 s91, s91, 24
            s_add_u32 s90, s90, s91
            v_add_u32 v22, s90, v{LANE}
            s_mov_b64 exec, 0xfff
            global_store_byte v22, v21, s[26:27]
            s_mov_b64 exec, -1""")
            p.label(L)

    def srd(base, ptr, size):
        p(f"""s_mov_b32 s{base}, s{ptr}
        s_mov_b32 s{base+1}, s{ptr+1}
        s_mov_b32 s{base+2}, {size}
        s_mov_b32 s{base+3}, 0x20000""")

    def signal(off, val=ONE):
        p(f"""s_mov_b64 exec, 1
        ds_add_u32 v{SEMA}, v{val} offset:{off}
        s_mov_b64 exec, -1""")

    def semwait(off, target, tmpv, mask=None, keep=None):
        L = newl("sw")
        p.label(L)
        p(f"""ds_read_b32 v{tmpv}, v{SEMA} offset:{off}
        s_waitcnt lgkmcnt(0)
        v_readfirstlane_b32 s{T0}, v{tmpv}""")
        if keep is not None: p(f"s_mov_b32 s{keep}, s{T0}")
        if mask is not None: p(f"s_and_b32 s{T0}, s{T0}, {mask}")
        L2 = newl("sd")
        p(f"""s_cmp_ge_u32 s{T0}, {target}
        s_cbranch_scc1 {L2}
        s_add_u32 s93, s93, 1
        s_cmp_lt_u32 s93, {SPIN_MAX}
        s_cbranch_scc1 {L}
        s_endpgm""")
        p.label(L2)

    p(f"""s_cmp_gt_u32 s2, {NWG}
    s_cbranch_scc1 L_end
    s_load_dwordx16 s[4:19], s[0:1], 0
    s_load_dwordx8 s[20:27], s[0:1], 64
    s_load_dwordx2 s[28:29], s[0:1], 96
    v_lshrrev_b32 v4, 6, v0
    v_and_b32 v{LANE}, 63, v0
    v_readfirstlane_b32 s{WV}, v4
    v_mov_b32 v{ZERO}, 0
    v_mov_b32 v{ONE}, 1
    s_mov_b32 s93, 0
    v_lshlrev_b32 v4, 2, v{LANE}
    s_cmp_eq_u32 s2, {NWG}
    s_cbranch_scc1 L_upd
    ds_write_b32 v4, v{ZERO}
    s_and_b32 s{W}, s{WV}, 3
    s_cmp_ge_u32 s2, {NPROD}
    s_cbranch_scc1 L_noimg
    v_mov_b32 v8, {EMPTY}
    v_mov_b32 v9, {EMPTY}
    v_mov_b32 v10, {EMPTY}
    v_mov_b32 v11, {EMPTY}
    v_lshlrev_b32 v4, 4, v0
    v_add_u32 v4, {IMG}, v4
    ds_write_b128 v4, v[8:11]
    ds_write_b128 v4, v[8:11] offset:8192
    ds_write_b128 v4, v[8:11] offset:16384
    ds_write_b128 v4, v[8:11] offset:24576
    v_lshlrev_b32 v4, 2, v0
    s_mul_i32 s{T0}, s2, 10000
    s_movk_i32 s{T1}, 4096
    s_movk_i32 s{T2}, 8192
    s_waitcnt lgkmcnt(0)""")
    BD, BS, BB, BH, BR, BT = 200, 205, 210, 215, 220, 225
    p(f"""s_add_u32 s{SRD_DST}, s8, s{T0}
    s_addc_u32 s{SRD_DST+1}, s9, 0
    s_mov_b32 s{SRD_DST+2}, 10000
    s_mov_b32 s{SRD_DST+3}, 0x20000
    s_add_u32 s{SRD_SRC}, s6, s{T0}
    s_addc_u32 s{SRD_SRC+1}, s7, 0
    s_mov_b32 s{SRD_SRC+2}, 10000
    s_mov_b32 s{SRD_SRC+3}, 0x20000""")
    for i, (so, im) in enumerate([("0", 0), ("0", 2048), (f"s{T1}", 0), (f"s{T1}", 2048), (f"s{T2}", 0)]):
        p(f"buffer_load_dword v{BD+i}, v4, s[{SRD_DST}:{SRD_DST+3}], {so} offen offset:{im}")
    for i, (so, im) in enumerate([("0", 0), ("0", 2048), (f"s{T1}", 0), (f"s{T1}", 2048), (f"s{T2}", 0)]):
        p(f"buffer_load_dword v{BS+i}, v4, s[{SRD_SRC}:{SRD_SRC+3}], {so} offen offset:{im}")
    p.label("L_noimg")
    p("s_waitcnt lgkmcnt(0)")
    if opt.stamps: p('v_mov_b32 v0, 0')
    stamp(0)
    srd(SRD_X, 4, 5120000)
    srd(SRD_OUT, 24, 5120000)
    p(f"""s_cmp_ge_u32 s{WV}, 4
    s_cbranch_scc1 L_A""")

    DC, DK, DT = 4, 8, 12
    VT, VK, VB, VF01, VF2 = 16, 20, 22, 26, 27
    VQ01, VQ2, VQK, VOUT = 28, 29, 30, 34
    GT = 38
    PA, PB, QA, QB = 48, 64, 76, 92
    ACC1, ACC2 = 104, 152
    SRD_W, SRD_PF, SOFF, RB, IT = 52, 56, 60, 64, 65
    J, G4 = 240, 241

    p(f"""s_cmp_eq_u32 s{W}, 1
    s_cselect_b64 s[{SRD_PF}:{SRD_PF+1}], s[20:21], s[18:19]
    s_cmp_eq_u32 s{W}, 2
    s_cselect_b64 s[{SRD_PF}:{SRD_PF+1}], s[22:23], s[{SRD_PF}:{SRD_PF+1}]
    s_cmp_eq_u32 s{W}, 3
    s_cselect_b64 s[{SRD_PF}:{SRD_PF+1}], s[16:17], s[{SRD_PF}:{SRD_PF+1}]
    s_mov_b32 s{SRD_PF+2}, 131072
    s_mov_b32 s{SRD_PF+3}, 0x20000
    s_lshr_b32 s{T0}, s2, 3
    s_and_b32 s{T0}, s{T0}, 31
    s_lshl_b32 s{T0}, s{T0}, 12
    v_lshlrev_b32 v{GT}, 7, v{LANE}
    s_mov_b32 exec_hi, 0
    buffer_load_dword v{GT+1}, v{GT}, s[{SRD_PF}:{SRD_PF+3}], s{T0} offen
    s_mov_b32 exec_hi, -1""")
    stamp(12)
    p(f"""v_lshrrev_b32 v{GT+2}, 5, v{LANE}
    s_mul_i32 s{T0}, s{W}, 10
    v_add_u32 v{GT+2}, s{T0}, v{GT+2}
    v_and_b32 v{GT+3}, 31, v{LANE}
    s_mul_i32 s{T1}, s2, 20480
    s_mul_i32 s{T2}, s{W}, 5120
    s_add_u32 s{T2}, s{T2}, {XB}""")
    for k in range(5):
        p(f"""v_and_b32 v{GT+4}, 15, v{GT+2}
        v_xor_b32 v{GT+4}, v{GT+4}, v{GT+3}
        v_lshlrev_b32 v{GT+4}, 4, v{GT+4}
        v_lshl_add_u32 v{GT+4}, v{GT+2}, 9, v{GT+4}
        s_add_u32 m0, s{T2}, {k*1024}
        v_add_u32 v{GT+2}, 2, v{GT+2}
        buffer_load_dwordx4 v{GT+4}, s[{SRD_X}:{SRD_X+3}], s{T1} offen lds""")
    p(f"""v_lshrrev_b32 v{GT}, 3, v{LANE}
    v_and_b32 v{GT+2}, 7, v{LANE}
    v_and_b32 v{GT+3}, 2, v{GT}
    v_xor_b32 v{GT+3}, v{GT+3}, v{GT+2}
    v_lshlrev_b32 v{GT+4}, 9, v{GT}
    s_lshl_b32 s{T0}, s{W}, 7
    v_add_u32 v{GT+4}, s{T0}, v{GT+4}
    v_lshl_add_u32 v{DT}, v{GT+3}, 4, v{GT+4}
    v_xor_b32 v{GT+3}, 4, v{GT+3}
    v_lshl_add_u32 v{DT+1}, v{GT+3}, 4, v{GT+4}
    v_add_u32 v{DT+2}, {2*15360}, v{DT}
    v_add_u32 v{DT+3}, {3*15360}, v{DT+1}
    v_add_u32 v{DT+1}, {15360}, v{DT+1}
    s_lshl_b32 s{RB}, s{W}, 14
    s_add_u32 s{RB}, s{RB}, {RING}""")
    p(f"""s_mov_b32 s{SRD_W}, s18
    s_mov_b32 s{SRD_W+1}, s19
    s_mov_b32 s{SRD_W+2}, 131072
    s_mov_b32 s{SRD_W+3}, 0x20000""")

    def set_soff_T(h):
        for j in range(4): p(f"s_mov_b32 s{SOFF+j}, {j*4096 + h*65536}")
    def set_soff_K(b):
        for j in range(4): p(f"s_mov_b32 s{SOFF+j}, {(j>>1)*128 + (j&1)*16384 + b*256}")
    def issue(j, regs=DC):
        p(f"s_add_u32 m0, s{RB}, {j*4096}")
        for g in range(4):
            p(f"buffer_load_dwordx4 v{regs+g}, s[{SRD_W}:{SRD_W+3}], s{SOFF+j} offen offset:{g*1024} lds")
    set_soff_T(0)
    for j in range(4): issue(j, DT)
    stamp(13)
    p(f"""v_lshrrev_b32 v{GT+3}, 1, v{GT}
    v_xor_b32 v{GT+3}, v{GT+3}, v{GT+2}
    s_lshl_b32 s{T0}, s{W}, 15
    v_lshlrev_b32 v{GT+4}, 9, v{GT}
    v_add_u32 v{GT+4}, s{T0}, v{GT+4}
    v_lshl_add_u32 v{DK}, v{GT+3}, 4, v{GT+4}
    v_xor_b32 v{GT+3}, 4, v{GT+3}
    v_lshl_add_u32 v{DK+1}, v{GT+3}, 4, v{GT+4}
    v_add_u32 v{DK+2}, {2*3072}, v{DK}
    v_add_u32 v{DK+3}, {3*3072}, v{DK+1}
    v_add_u32 v{DK+1}, {3072}, v{DK+1}""")
    for g in range(4): p(f"v_mov_b32 v{DC+g}, v{DT+g}")
    p(f"""v_and_b32 v{J}, 15, v{LANE}
    v_lshrrev_b32 v{G4}, 4, v{LANE}""")
    p(f"""v_bfe_u32 v{GT}, v{LANE}, 2, 2
    v_and_b32 v{GT+2}, 3, v{LANE}
    v_lshlrev_b32 v{GT+3}, 10, v{G4}
    v_lshl_add_u32 v{GT+3}, v{GT}, 7, v{GT+3}
    v_lshl_add_u32 v{GT+3}, v{GT+2}, 3, v{GT+3}
    v_add_u32 v{GT+3}, s{RB}, v{GT+3}
    v_and_b32 v{GT+4}, 1, v{G4}
    v_lshlrev_b32 v{GT+4}, 1, v{GT+4}
    v_lshrrev_b32 v{GT}, 1, v{GT}
    v_or_b32 v{GT+4}, v{GT+4}, v{GT}""")
    for t in range(4):
        p(f"""v_xor_b32 v{GT}, {t}, v{GT+4}
        v_lshl_add_u32 v{VT+t}, v{GT}, 5, v{GT+3}""")
    p(f"""v_lshrrev_b32 v{GT}, 3, v{J}
    v_and_b32 v{GT+2}, 7, v{J}
    v_lshlrev_b32 v{GT}, 10, v{GT}
    v_lshl_add_u32 v{GT}, v{GT+2}, 7, v{GT}
    v_add_u32 v{GT}, s{RB}, v{GT}
    v_lshrrev_b32 v{GT+3}, 1, v{J}
    v_xor_b32 v{GT+3}, v{GT+3}, v{G4}
    v_lshl_add_u32 v{VK}, v{GT+3}, 4, v{GT}
    v_xor_b32 v{GT+3}, 4, v{GT+3}
    v_lshl_add_u32 v{VK+1}, v{GT+3}, 4, v{GT}""")
    p(f"""v_lshlrev_b32 v{GT}, 9, v{J}
    v_add_u32 v{GT}, {XB}, v{GT}
    v_lshlrev_b32 v{GT+3}, 2, v{G4}
    v_xor_b32 v{GT+3}, v{GT+3}, v{J}""")
    for r in range(4):
        p(f"""v_xor_b32 v{GT+4}, {r}, v{GT+3}
        v_lshl_add_u32 v{VB+r}, v{GT+4}, 4, v{GT}""")
    p(f"""v_lshlrev_b32 v{GT+3}, 4, v{J}
    v_lshl_add_u32 v{VF01}, v{G4}, 8, v{GT+3}
    v_add_u32 v{VF01}, {YB}, v{VF01}
    v_lshlrev_b32 v{GT+3}, 4, v{GT+2}
    v_lshl_add_u32 v{VF2}, v{G4}, 7, v{GT+3}
    v_add_u32 v{VF2}, {YB+2048}, v{VF2}""")
    p(f"""v_lshrrev_b32 v{GT+4}, 1, v{G4}
    v_and_b32 v{GT+5}, 1, v{G4}
    v_lshlrev_b32 v{GT+5}, 3, v{GT+5}
    s_mul_i32 s{T0}, s{W}, 5120
    s_add_u32 s{T0}, s{T0}, {YB}
    v_lshl_add_u32 v{GT+6}, v{J}, 4, v{GT+5}
    v_lshl_add_u32 v{GT+6}, v{GT+4}, 8, v{GT+6}
    v_add_u32 v{VQ01}, s{T0}, v{GT+6}
    v_add_u32 v{GT+6}, v{GT+3}, v{GT+5}
    v_lshl_add_u32 v{GT+6}, v{GT+4}, 7, v{GT+6}
    s_add_u32 s{T0}, s{T0}, 2048
    v_add_u32 v{VQ2}, s{T0}, v{GT+6}""")
    p(f"""s_lshl_b32 s{T0}, s{W}, 7
    v_add_u32 v{GT}, s{T0}, v{GT}
    v_add_u32 v{GT}, v{GT}, v{GT+5}
    s_lshr_b32 s{T0}, s{W}, 1
    s_lshl_b32 s{T0}, s{T0}, 7
    s_add_u32 s{T0}, s{T0}, s{RB}
    v_lshl_add_u32 v{GT+6}, v{J}, 7, v{GT+5}
    v_add_u32 v{GT+6}, s{T0}, v{GT+6}
    v_xor_b32 v{GT+4}, v{GT+4}, v{GT+2}""")
    for t in range(4):
        p(f"""v_xor_b32 v{GT+3}, {2*t}, v{GT+4}
        v_lshl_add_u32 v{VQK+t}, v{GT+3}, 4, v{GT}
        v_lshl_add_u32 v{VOUT+t}, v{GT+3}, 4, v{GT+6}""")
    for i in range(48): p(f"v_mov_b32 v{ACC1+i}, 0")
    for i in range(48): p(f"v_mov_b32 v{ACC2+i}, 0")
    stamp(14)
    p(f"""s_waitcnt lgkmcnt(0)
    s_barrier""")
    stamp(15)
    p(f"""s_cmp_ge_u32 s2, {NPROD}
    s_cbranch_scc1 L_G_nobin
    s_waitcnt vmcnt(22)""")
    stamp(16)
    p(f"""s_call_b64 s[{LINK}:{LINK+1}], L_bin""")
    stamp(17)
    p.label("L_G_nobin")
    if opt.stamps:
        p("s_waitcnt vmcnt(21)")
        stamp(18)
    p("s_waitcnt vmcnt(16)")
    signal(S_X)
    stamp(1)
    semwait(S_X, 4, GT)
    stamp(2)

    def acc(base, t, T): return base + (t*3 + T)*4
    def mfmas(base, A, B):
        for t in range(4):
            for T in range(3):
                a = acc(base, t, T)
                p(f"v_mfma_f32_16x16x32_bf16 {v(a,4)}, {v(A+4*t,4)}, {v(B+4*T,4)}, {v(a,4)}")
    def read_T(j, A):
        for t in range(4):
            p(f"ds_read_b64_tr_b16 {v(A+4*t,2)}, v{VT+t} offset:{j*4096}")
            p(f"ds_read_b64_tr_b16 {v(A+4*t+2,2)}, v{VT+t} offset:{j*4096+512}")
    def read_Bx(r, B):
        for T in range(3): p(f"ds_read_b128 {v(B+4*T,4)}, v{VB+r} offset:{T*8192}")
    def read_Bf(r, B):
        p(f"ds_read_b128 {v(B,4)}, v{VF01} offset:{r*2560}")
        p(f"ds_read_b128 {v(B+4,4)}, v{VF01} offset:{r*2560+1024}")
        p(f"ds_read_b128 {v(B+8,4)}, v{VF2} offset:{r*2560}")
    sets = [(PA, PB), (QA, QB)]
    def bodyT(readB, base, last_cond=False):
        def W(n, nlast):
            p(f"s_waitcnt vmcnt({n})")
            if last_cond and nlast != n:
                L = newl("w")
                p(f"""s_cbranch_scc0 {L}
                s_waitcnt vmcnt({nlast})""")
                p.label(L)
        def I(j):
            if last_cond:
                L = newl("i")
                p(f"s_cbranch_scc1 {L}")
                issue(j)
                p(f"s_cmp_eq_u32 s{IT}, 3")
                p.label(L)
            else:
                issue(j)
        if last_cond: p(f"s_cmp_eq_u32 s{IT}, 3")
        W(12, 12); read_T(0, PA); readB(0, PB)
        W(8, 8); read_T(1, QA); readB(1, QB)
        p("s_waitcnt lgkmcnt(11)"); I(0); mfmas(base, PA, PB)
        W(8, 4); read_T(2, PA); readB(2, PB)
        p("s_waitcnt lgkmcnt(11)"); I(1); mfmas(base, QA, QB)
        W(8, 0); read_T(3, QA); readB(3, QB)
        p("s_waitcnt lgkmcnt(11)"); I(2); mfmas(base, PA, PB)
        p("s_waitcnt lgkmcnt(0)"); I(3); mfmas(base, QA, QB)

    def read_K(pi, kk, A):
        for t in range(4):
            p(f"ds_read_b128 {v(A+4*t,4)}, v{VK+kk} offset:{(2*pi + (t>>1))*4096 + (t&1)*2048}")
    def bodyK(base):
        p("s_waitcnt vmcnt(8)")
        read_K(0, 0, PA); read_Bf(0, PB)
        read_K(0, 1, QA); read_Bf(1, QB)
        p("s_waitcnt lgkmcnt(7)"); mfmas(base, PA, PB)
        p("s_waitcnt lgkmcnt(0)"); issue(0); issue(1)
        p("s_waitcnt vmcnt(8)")
        read_K(1, 0, PA); read_Bf(2, PB)
        mfmas(base, QA, QB)
        read_K(1, 1, QA); read_Bf(3, QB)
        p("s_waitcnt lgkmcnt(7)"); mfmas(base, PA, PB)
        p("s_waitcnt lgkmcnt(0)"); issue(2); issue(3)
        mfmas(base, QA, QB)

    def cvt_write(base, addr_of, mask_T2):
        k = 0
        for T in range(3):
            if T == 2 and mask_T2: p("s_mov_b32 exec_lo, 0x00ff00ff\ns_mov_b32 exec_hi, 0x00ff00ff")
            for t in range(4):
                a = acc(base, t, T); d = GT + 2*(k % 4); k += 1
                p(f"v_cvt_pk_bf16_f32 v{d}, v{a}, v{a+1}")
                p(f"v_cvt_pk_bf16_f32 v{d+1}, v{a+2}, v{a+3}")
                r, im = addr_of(t, T)
                p(f"ds_write_b64 v{r}, {v(d,2)} offset:{im}")
            if T == 2 and mask_T2: p("s_mov_b64 exec, -1")

    set_soff_T(1)
    p(f"s_mov_b32 s{IT}, 0")
    p.label("L_g1")
    bodyT(read_Bx, ACC1)
    p(f"""s_cmp_lg_u32 s{IT}, 0
    s_cbranch_scc1 L_g1_done
    s_mov_b32 s{IT}, 1
    s_mov_b32 s{SRD_W}, s20
    s_mov_b32 s{SRD_W+1}, s21""")
    set_soff_K(0)
    for g in range(4): p(f"v_mov_b32 v{DC+g}, v{DK+g}")
    for r in range(4): p(f"v_add_u32 v{VB+r}, 256, v{VB+r}")
    p("s_branch L_g1")
    p.label("L_g1_done")
    stamp(3)
    cvt_write(ACC1, lambda t, T: (VQ01, (t>>1)*2560 + (t&1)*512 + T*1024) if T < 2 else (VQ2, (t>>1)*2560 + (t&1)*256), True)
    signal(S_Q)
    for i in range(48): p(f"v_mov_b32 v{ACC1+i}, 0")
    set_soff_K(1)
    p(f"s_mov_b32 s{IT}, 0")
    semwait(S_Q, 4, GT)
    stamp(4)
    p.label("L_g2")
    bodyK(ACC2)
    p(f"""s_cmp_lg_u32 s{IT}, 0
    s_cbranch_scc1 L_g2_done
    s_mov_b32 s{IT}, 1
    s_mov_b32 s{SRD_W}, s22
    s_mov_b32 s{SRD_W+1}, s23""")
    set_soff_T(0)
    for g in range(4): p(f"v_mov_b32 v{DC+g}, v{DT+g}")
    p(f"""v_add_u32 v{VF01}, 10240, v{VF01}
    v_add_u32 v{VF2}, 10240, v{VF2}
    s_branch L_g2""")
    p.label("L_g2_done")
    stamp(5)
    cvt_write(ACC2, lambda t, T: (VQK+t, T*8192), True)
    signal(S_QK)
    p(f"""v_subrev_u32 v{VF01}, 10240, v{VF01}
    v_subrev_u32 v{VF2}, 10240, v{VF2}""")
    set_soff_T(1)
    p(f"s_mov_b32 s{IT}, 0")
    semwait(S_AA, 4, GT)
    stamp(6)
    p.label("L_g3")
    bodyT(read_Bf, ACC1, last_cond=True)
    p(f"""s_cbranch_scc1 L_g3_done
    s_add_u32 s{IT}, s{IT}, 1
    s_cmp_eq_u32 s{IT}, 2
    s_cbranch_scc1 L_g3_mid
    v_add_u32 v{VF01}, 10240, v{VF01}
    v_add_u32 v{VF2}, 10240, v{VF2}
    s_cmp_eq_u32 s{IT}, 3
    s_cbranch_scc1 L_g3
    s_mov_b32 s{SRD_W}, s16
    s_mov_b32 s{SRD_W+1}, s17""")
    set_soff_T(0)
    p("s_branch L_g3")
    p.label("L_g3_mid")
    p(f"""v_subrev_u32 v{VF01}, {10240 + YB - XB}, v{VF01}
    v_subrev_u32 v{VF2}, {10240 + YB - XB}, v{VF2}""")
    set_soff_T(1)
    stamp(7)
    semwait(S_AL, 4, GT)
    stamp(8)
    p("s_branch L_g3")
    p.label("L_g3_done")
    stamp(9)
    cvt_write(ACC1, lambda t, T: (VOUT+t, T*2048), False)
    p("s_branch L_final")

    p.label("L_bin")
    p(f"""s_movk_i32 s{T0}, -40
    s_mov_b32 s{T1}, {IMG}
    s_mov_b32 s{T2}, {EMPTY + opt.slot_cap}
    v_lshl_add_u32 v{BT}, s{WV}, 6, v{LANE}
    v_cmp_gt_u32 vcc, 452, v{BT}
    s_mov_b64 s[96:97], vcc""")
    for i in range(5):
        p(f"""v_mul_u32_u24 v{BB+i}, 52429, v{BD+i}
        v_lshrrev_b32 v{BB+i}, 21, v{BB+i}
        v_mad_i32_i24 v{BD+i}, v{BB+i}, s{T0}, v{BD+i}
        v_mul_u32_u24 v{BT}, 26, v{BD+i}
        v_lshrrev_b32 v{BT}, 8, v{BT}
        v_mad_u32_u24 v{BD+i}, v{BT}, 6, v{BD+i}
        v_and_b32 v{BT}, 31, v{BB+i}
        v_lshl_add_u32 v{BR+i}, v{BB+i}, 7, s{T1}
        v_lshl_add_u32 v{BH+i}, v{BT}, 2, v{BR+i}""")
        if i == 4: p("s_mov_b64 exec, s[96:97]")
        p(f"ds_add_rtn_u32 v{BH+i}, v{BH+i}, v{ONE}")
        p(f"v_lshl_or_b32 v{BS+i}, v{BD+i}, 14, v{BS+i}")
    p("s_mov_b64 exec, -1")
    for i in range(5):
        p(f"""s_waitcnt lgkmcnt(4)
        v_add3_u32 v{BT}, v{BB+i}, v{BH+i}, 1
        v_and_b32 v{BT}, 31, v{BT}
        v_lshl_add_u32 v{BT}, v{BT}, 2, v{BR+i}
        v_cmp_gt_u32 vcc, s{T2}, v{BH+i}""")
        if i == 4: p("s_and_b64 exec, vcc, s[96:97]")
        else: p("s_mov_b64 exec, vcc")
        p(f"""ds_write_b32 v{BT}, v{BS+i}
        s_mov_b64 exec, -1""")
    p(f"""s_waitcnt lgkmcnt(0)
    s_barrier
    s_setpc_b64 s[{LINK}:{LINK+1}]""")

    CG16, M0, M1, M2, QKA, FW, DISD, LRD, SRD_ = 4, 5, 6, 7, 8, 11, 12, 13, 14
    AD, IDX, S0, S1, P0, P1, EN, DV = 16, 24, 28, 32, 36, 40, 44, 52
    AT = 62
    ACC = 64
    H = [128, 160, 192, 224]
    SRD_E, SRD_DIS, SRD_WS = 52, 56, 60
    TAGP, TAGC, RHO, MODE, SEL0, SEL1, TL, TR = 64, 65, 66, 67, 68, 69, 70, 71
    MK = 72
    CDIS, CCNT, CSIMG, C512 = 88, 89, 98, 99
    p.label("L_A")
    p(f"""global_load_dword v15, v{ZERO}, s[28:29] sc1
    s_mov_b32 s{SRD_E}, s10
    s_mov_b32 s{SRD_E+1}, s11
    s_mov_b32 s{SRD_E+2}, 160000
    s_mov_b32 s{SRD_E+3}, 0x20000
    s_mul_i32 s{T0}, s2, 640
    s_mul_i32 s{T1}, s{W}, 160
    s_add_u32 s{T0}, s{T0}, s{T1}
    v_lshrrev_b32 v{AT}, 4, v{LANE}
    v_lshlrev_b32 v{AD}, 5, v{AT}
    v_lshlrev_b32 v{AD+1}, 3, v{AT}
    buffer_load_dwordx4 {v(EN,4)}, v{AD}, s[{SRD_E}:{SRD_E+3}], s{T0} offen
    buffer_load_dwordx4 {v(EN+4,4)}, v{AD}, s[{SRD_E}:{SRD_E+3}], s{T0} offen offset:16
    buffer_load_dwordx2 {v(DV,2)}, v{AD+1}, s[{SRD_E}:{SRD_E+3}], s{T0} offen offset:128""")
    srd(SRD_DIS, 14, 20000)
    p(f"""s_add_u32 s{SRD_WS}, s28, {SLOT0}
    s_addc_u32 s{SRD_WS+1}, s29, 0
    s_mov_b32 s{SRD_WS+2}, {256*8192}
    s_mov_b32 s{SRD_WS+3}, 0x20000
    s_mov_b32 s{SEL0}, 0x05040100
    s_mov_b32 s{SEL1}, 0x07060302
    s_mov_b32 s{CDIS}, {DIS}
    s_mov_b32 s{CCNT}, {SEM + CNT}
    s_mov_b32 s{CSIMG}, {SIMG}
    s_movk_i32 s{C512}, 512
    s_mov_b32 s{MODE}, 0
    s_mov_b32 s{TL}, 0
    s_mov_b32 s{TR}, 0""")
    p(f"""v_and_b32 v{AT+1}, 15, v{LANE}
    v_lshlrev_b32 v{CG16}, 4, v{AT+1}
    v_lshlrev_b32 v{P0}, 1, v{AT}
    v_cmp_eq_u32 vcc, v{P0}, v{AT+1}
    v_add_u32 v{P0+1}, 1, v{P0}
    v_cmp_eq_u32 s[72:73], v{P0+1}, v{AT+1}
    v_lshrrev_b32 v{P0+2}, 1, v{AT}
    v_add_u32 v{P0+2}, 8, v{P0+2}
    v_cmp_eq_u32 s[74:75], v{P0+2}, v{AT+1}
    v_cndmask_b32_e64 v{M0}, 0, -1, vcc
    v_cndmask_b32_e64 v{M1}, 0, -1, s[72:73]
    v_cndmask_b32_e64 v{M2}, 0, -1, s[74:75]
    s_mul_i32 s{T0}, s{W}, 10""")
    for e in range(3):
        p(f"""v_add_u32 v{P1}, s{T0}, v{P0+e}
        v_and_b32 v{P1+1}, 7, v{P1}
        v_xor_b32 v{P1+1}, v{P1+1}, v{AT+1}
        v_lshlrev_b32 v{P1+1}, 4, v{P1+1}
        v_lshl_add_u32 v{P1+1}, v{P1}, 9, v{P1+1}
        v_add_u32 v{QKA+e}, {XB}, v{P1+1}""")
    p(f"""v_add_u32 v{P1}, s{T0}, v{AT+1}
    v_and_b32 v{P1+1}, 15, v{P1}
    v_lshrrev_b32 v{P1+2}, 4, v{P1}
    v_lshlrev_b32 v{P1+2}, 10, v{P1+2}
    v_lshl_add_u32 v{P1+2}, v{P1+1}, 4, v{P1+2}
    v_lshl_add_u32 v{P1+3}, v{AT}, 8, v{P1+2}
    v_lshl_add_u32 v{P1+2}, v{AT}, 7, v{P1+2}
    v_cmp_gt_u32 vcc, 32, v{P1}
    s_mul_i32 s{T1}, s2, 40
    v_add_u32 v{DISD}, s{T1}, v{P1}
    v_cndmask_b32_e64 v{FW}, v{P1+2}, v{P1+3}, vcc
    v_add_u32 v{FW}, {YB}, v{FW}
    v_lshl_add_u32 v{DISD}, v{DISD}, 1, s{CDIS}""")
    stamp(14)
    p(f"""s_waitcnt lgkmcnt(0)
    s_barrier""")
    stamp(15)
    p(f"""s_cmp_ge_u32 s2, {NPROD}
    s_cbranch_scc1 L_A_nobin
    s_waitcnt vmcnt(4)""")
    stamp(16)
    p(f"""s_call_b64 s[{LINK}:{LINK+1}], L_bin""")
    stamp(17)
    p(f"""v_lshl_add_u32 v{P0}, s{W}, 6, v{LANE}
    v_lshlrev_b32 v{P0+1}, 4, v{P0}
    v_add_u32 v{P0+1}, {IMG}, v{P0+1}""")
    for k in range(8): p(f"ds_read_b128 {v(ACC+4*k,4)}, v{P0+1} offset:{k*4096}")
    p(f"""v_lshrrev_b32 v{P0+2}, 3, v{P0}
    v_and_b32 v{P0+3}, 7, v{P0}
    v_lshlrev_b32 v{P0+2}, 13, v{P0+2}
    v_lshlrev_b32 v{P0+3}, 4, v{P0+3}
    s_lshl_b32 s{T0}, s2, 7
    v_add3_u32 v{P0+2}, v{P0+2}, v{P0+3}, s{T0}
    s_waitcnt vmcnt(0)
    v_readfirstlane_b32 s{TAGP}, v15
    s_lshr_b32 s{TAGP}, s{TAGP}, 20
    s_add_u32 s{TAGP}, s{TAGP}, {TAGINC}
    s_lshl_b32 s{TAGP}, s{TAGP}, 20
    s_mov_b32 s{T0}, 0""")
    for k in range(8):
        p(f"s_waitcnt lgkmcnt({7-k})")
        for d in range(4): p(f"v_or_b32 v{ACC+4*k+d}, s{TAGP}, v{ACC+4*k+d}")
        p(f"buffer_store_dwordx4 {v(ACC+4*k,4)}, v{P0+2}, s[{SRD_WS}:{SRD_WS+3}], s{T0} offen sc1")
        if k < 7: p(f"s_add_u32 s{T0}, s{T0}, {32*8192}")
    signal(S_CPY)
    stamp(1)
    p("s_branch L_A_rows")
    p.label("L_A_nobin")
    p(f"""s_waitcnt vmcnt(0)
    v_readfirstlane_b32 s{TAGP}, v15
    s_lshr_b32 s{TAGP}, s{TAGP}, 20
    s_add_u32 s{TAGP}, s{TAGP}, {TAGINC}
    s_lshl_b32 s{TAGP}, s{TAGP}, 20""")
    p.label("L_A_rows")
    stamp(18)
    for i in range(8):
        p(f"""v_lshl_add_u32 v{AD+i}, v{EN+i}, 9, v{CG16}
        buffer_load_dwordx4 {v(H[0]+4*i,4)}, v{AD+i}, s[{SRD_X}:{SRD_X+3}], 0 offen
        buffer_load_dwordx4 {v(H[1]+4*i,4)}, v{AD+i}, s[{SRD_X}:{SRD_X+3}], 0 offen offset:256""")
    for i in range(2):
        p(f"""v_lshl_add_u32 v{IDX+i}, v{DV+i}, 9, v{CG16}
        buffer_load_dwordx4 {v(H[2]+8*i,4)}, v{IDX+i}, s[{SRD_X}:{SRD_X+3}], 0 offen
        buffer_load_dwordx4 {v(H[2]+8*i+4,4)}, v{IDX+i}, s[{SRD_X}:{SRD_X+3}], 0 offen offset:256""")
    p(f"global_load_dword v15, v{ZERO}, s[26:27] sc1")
    stamp(2)
    p(f"""s_cmp_ge_u32 s2, {NPROD}
    s_cbranch_scc1 L_A_nocpy""")
    semwait(S_CPY, 4, AT)
    p.label("L_A_nocpy")
    p(f"""v_lshlrev_b32 v{P0}, 4, v{LANE}
    s_mul_i32 s{T0}, s{W}, 5120
    s_add_u32 s{T1}, s{T0}, {DIS}""")
    for k in range(5):
        p(f"""s_add_u32 m0, s{T1}, {k*1024}
        s_nop 0
        buffer_load_dwordx4 v{P0}, s[{SRD_DIS}:{SRD_DIS+3}], s{T0} offen lds""")
        if k < 4: p(f"s_add_u32 s{T0}, s{T0}, 1024")
    p(f"""v_lshrrev_b32 v{AT}, 4, v{LANE}
    s_lshl_b32 s{T0}, s{W}, 8
    s_add_u32 s{T0}, s{T0}, {SIMG}
    v_lshl_add_u32 v{SRD_}, v{AT}, 10, v{CG16}
    v_add_u32 v{SRD_}, s{T0}, v{SRD_}
    v_or_b32 v{LRD}, 240, v{SRD_}""")
    p(f"s_call_b64 s[{LINK}:{LINK+1}], L_init")
    p(f"""v_mov_b32 v{P1+1}, 0
    v_mov_b32 v{P1+3}, 0
    v_mov_b32 v{P0+1}, 0
    v_mov_b32 v{P0+3}, 0
    v_mov_b32 v{S1+1}, 0
    s_waitcnt vmcnt(0)
    v_readfirstlane_b32 s{T0}, v15""")
    signal(S_I)
    p(f"""s_bitcmp1_b32 s{T0}, 16
    s_cbranch_scc0 L_A_tagok
    s_add_u32 s{T0}, s{T0}, {TAGINC}
    s_lshl_b32 s{TAGP}, s{T0}, 20""")
    p.label("L_A_tagok")
    p(f"""s_lshl_b32 s{T0}, s{W}, 11
    s_lshl_b32 s{T1}, s2, 13
    s_add_u32 s{T0}, s{T0}, s{T1}
    v_lshlrev_b32 v15, 4, v{LANE}
    v_add_u32 v15, s{T0}, v15""")
    stamp(3)
    semwait(S_QK, 4, AT)
    stamp(4)
    p(f"""buffer_load_dwordx4 {v(EN,4)}, v15, s[{SRD_WS}:{SRD_WS+3}], 0 offen sc1
    buffer_load_dwordx4 {v(EN+4,4)}, v15, s[{SRD_WS}:{SRD_WS+3}], 0 offen offset:1024 sc1""")
    QK0 = H[3]
    for e in range(3):
        for h in range(2):
            p(f"ds_read_b128 {v(QK0+8*e+4*h,4)}, v{QKA+e} offset:{h*256}")
    def raw(i, h, d): return (H[h] + 4*i + d) if i < 8 else (H[2] + 8*(i-8) + 4*h + d)
    for e, slots in ((0, range(0, 4)), (1, range(4, 8)), (2, range(8, 10))):
        p(f"s_waitcnt lgkmcnt({4-2*e})")
        for h in range(2):
            for d in range(4):
                for i in slots:
                    q = QK0 + 8*e + 4*h + d
                    if h == 0 and d == 0: p(f"v_dot2_f32_bf16 v{DV+i}, v{raw(i,h,d)}, v{q}, 0")
                    else: p(f"v_dot2c_f32_bf16 v{DV+i}, v{raw(i,h,d)}, v{q}")
    for rot in (8, 4, 2, 1):
        for i in range(10):
            p(f"v_add_f32_dpp v{DV+i}, v{DV+i}, v{DV+i} row_ror:{rot} row_mask:0xf bank_mask:0xf")
    p(f"s_mov_b32 s{T0}, 0x3db8aa3b")
    for i in range(10): p(f"v_mul_f32 v{DV+i}, s{T0}, v{DV+i}")
    for i in range(10): p(f"v_exp_f32 v{DV+i}, v{DV+i}")
    p(f"""s_mov_b32 s{T0}, 0x3089705f
    v_add_f32 v{AT}, v{DV+8}, v{DV+9}
    v_add_f32 v{S0}, v{DV}, v{DV+1}
    v_add_f32 v{S0+1}, v{DV+2}, v{DV+3}
    v_mov_b32 v{AT+1}, v{AT}
    v_add_f32 v{S0+2}, v{DV+4}, v{DV+5}
    v_add_f32 v{S0+3}, v{DV+6}, v{DV+7}
    v_permlane16_swap_b32 v{AT}, v{AT+1}
    v_add_f32 v{S0}, v{S0}, v{S0+1}""")
    p(f"""v_add_f32 v{S0+2}, v{S0+2}, v{S0+3}
    v_add_f32 v{AT}, v{AT}, v{AT+1}
    v_add_f32 v{S0}, s{T0}, v{S0}
    v_add_f32 v{S0+2}, s{T0}, v{S0+2}
    v_add_f32 v{AT}, s{T0}, v{AT}
    v_rcp_f32 v{S0}, v{S0}
    v_rcp_f32 v{S0+2}, v{S0+2}
    v_rcp_f32 v{AT}, v{AT}""")
    for i in range(10):
        r = S0 if i < 4 else (S0+2 if i < 8 else AT)
        p(f"v_mul_f32 v{DV+i}, v{r}, v{DV+i}")
    for k in range(4):
        p(f"v_cvt_pk_bf16_f32 v{S0+k}, v{DV+2*k}, v{DV+2*k+1}")
    p(f"v_cvt_pk_bf16_f32 v{S1}, v{DV+8}, v{DV+9}")
    for k in range(4): p(f"v_and_b32 v{S0+k}, v{M0 if k < 2 else M1}, v{S0+k}")
    p(f"v_and_b32 v{S1}, v{M2}, v{S1}")
    stamp(5)
    pp = [P0, P0+2, P1, P1+2]
    def perm1(n):
        h, t = n >> 3, n & 7
        p(f"v_perm_b32 v{pp[n % 4]}, v{raw(9,h,t>>1)}, v{raw(8,h,t>>1)}, s{SEL1 if t&1 else SEL0}")
    perm1(0); perm1(1)
    for n in range(16):
        if n + 2 < 16: perm1(n+2)
        a = ACC + 4*n
        p(f"v_mfma_f32_16x16x16_bf16 {v(a,4)}, {v(pp[n % 4],2)}, {v(S1,2)}, 0")
    p(f"""s_mov_b32 s{RHO}, 0
    s_call_b64 s[{LINK}:{LINK+1}], L_agg
    s_call_b64 s[{LINK}:{LINK+1}], L_wout""")
    signal(S_AA)
    stamp(6)
    p(f"v_add_u32 v{FW}, {(XB - YB) & 0xffffffff}, v{FW}")
    p.label("L_poll")
    p("s_waitcnt vmcnt(0)")
    for k in range(8): p(f"v_xor_b32 v{EN+k}, s{TAGP}, v{EN+k}")
    p(f"""v_max3_u32 v{AT}, v{EN}, v{EN+1}, v{EN+2}
    v_max3_u32 v{AT+1}, v{EN+3}, v{EN+4}, v{EN+5}
    v_max3_u32 v{AT}, v{AT}, v{EN+6}, v{EN+7}
    v_max_u32 v{AT}, v{AT}, v{AT+1}
    v_cmp_lt_u32 vcc, 0xfffff, v{AT}
    s_cmp_eq_u64 vcc, 0
    s_cbranch_scc1 L_got
    s_add_u32 s93, s93, 16
    s_cmp_ge_u32 s93, {SPIN_MAX}
    s_cbranch_scc1 L_end
    s_sleep 1
    buffer_load_dwordx4 {v(EN,4)}, v15, s[{SRD_WS}:{SRD_WS+3}], 0 offen sc1
    buffer_load_dwordx4 {v(EN+4,4)}, v15, s[{SRD_WS}:{SRD_WS+3}], 0 offen offset:1024 sc1
    s_branch L_poll""")
    p.label("L_got")
    stamp(7)
    semwait(S_I, 4, AT+1)
    p(f"""ds_read_u16 v{DISD}, v{DISD}
    v_mov_b32 v{DV+9}, 0
    v_cmp_lt_u32 vcc, {EMPTY + opt.slot_cap}, v{AT}""")
    if opt.force_slow: p("s_mov_b64 vcc, -1")
    p(f"""s_cmp_lg_u64 vcc, 0
    s_cselect_b32 s{T2}, 0x10000, 0""")
    p.label("L_fill")
    FS, F0, FL, FP, FWt = H[2], H[2]+8, H[2]+16, H[2]+24, H[3]
    p(f"s_mov_b32 s{T0}, {EMPTY}")
    for k in range(8):
        p(f"""v_and_b32 v{FS+k}, 0x3fff, v{EN+k}
        v_cmp_gt_u32 s[{MK+2*k}:{MK+2*k+1}], s{T0}, v{EN+k}
        v_lshl_add_u32 v{FWt+k}, v{FS+k}, 1, s{CDIS}
        v_lshrrev_b32 v{FP+k}, 18, v{EN+k}
        v_lshl_add_u32 v{FP+k}, v{FP+k}, 2, s{CCNT}
        v_lshrrev_b32 v{F0+k}, 10, v{EN+k}
        s_mov_b64 exec, s[{MK+2*k}:{MK+2*k+1}]
        ds_read_u16 v{FWt+k}, v{FWt+k}
        ds_add_rtn_u32 v{FP+k}, v{FP+k}, v{ONE}
        s_mov_b64 exec, -1
        v_and_b32 v{F0+k}, 0x3f0, v{F0+k}
        v_or_b32 v{FL+k}, 240, v{F0+k}""")
    for k in range(8):
        p(f"""s_mov_b64 exec, s[{MK+2*k}:{MK+2*k+1}]
        s_waitcnt lgkmcnt(14)
        v_max_u32 v{DV+9}, v{DV+9}, v{FP+k}
        v_min_u32 v{FP+k}, 255, v{FP+k}
        v_lshlrev_b32 v{AT}, 1, v{FP+k}
        v_lshrrev_b32 v{FP+k}, 3, v{FP+k}
        v_and_or_b32 v{AT}, v{AT}, 14, s{CSIMG}
        v_lshl_add_u32 v{AT}, v{FP+k}, 10, v{AT}
        v_add_u32 v{F0+k}, v{F0+k}, v{AT}
        v_add_u32 v{FL+k}, v{FL+k}, v{AT}
        ds_write_b16 v{F0+k}, v{FWt+k}
        ds_write_b16 v{FL+k}, v{FS+k}""")
    p(f"""s_mov_b64 exec, -1
    v_cmp_lt_u32 vcc, 255, v{DV+9}
    s_or_b32 s{T1}, s{T2}, 0x10000
    s_cmp_lg_u64 vcc, 0
    s_cselect_b32 s{T2}, s{T1}, s{T2}
    s_add_u32 s{T2}, s{T2}, 1
    v_mov_b32 v{AT}, s{T2}
    s_add_u32 s{TL}, s{TL}, 4""")
    signal(S_L, AT)
    semwait(S_L, f"s{TL}", AT, mask=0xffff, keep=T1)
    p(f"""s_lshr_b32 s{T1}, s{T1}, 16
    s_cmp_eq_u32 s{MODE}, 0
    s_cselect_b32 s{T1}, s{T1}, 0
    s_cmp_lg_u32 s{T1}, 0
    s_cbranch_scc1 L_slow_enter
    s_lshl_b32 s{T0}, s{W}, 2
    v_mov_b32 v{AT}, s{T0}
    v_add_u32 v{AT}, s{CCNT}, v{AT}
    ds_read_b32 v{AT}, v{AT}
    ds_read_b128 {v(IDX,4)}, v{LRD}
    ds_read_b128 {v(P0,4)}, v{LRD} offset:4096
    ds_read_b128 {v(S0,4)}, v{SRD_}
    ds_read_b128 {v(S1,4)}, v{SRD_} offset:4096
    s_waitcnt lgkmcnt(4)
    v_readfirstlane_b32 s{RHO}, v{AT}
    s_add_u32 s{RHO}, s{RHO}, 31
    s_lshr_b32 s{RHO}, s{RHO}, 5
    s_cmp_eq_u32 s{RHO}, 0
    s_cbranch_scc1 L_round_done
    s_sub_u32 s{RHO}, s{RHO}, 1
    s_waitcnt lgkmcnt(3)""")
    def addrs(src):
        for i in range(8):
            sel = " op_sel:[1,0,0,0]" if i & 1 else ""
            p(f"v_mad_u32_u16 v{AD+i}, v{src + (i>>1)}, s{C512}, v{CG16}{sel}")
    def loads(u, h):
        for i in range(8):
            p(f"buffer_load_dwordx4 {v(H[u]+4*i,4)}, v{AD+i}, s[{SRD_X}:{SRD_X+3}], 0 offen" + (" offset:256" if h else ""))
    addrs(IDX); loads(0, 0); loads(1, 1)
    p(f"""s_cmp_eq_u32 s{RHO}, 0
    s_cbranch_scc1 L_pro_done
    s_waitcnt lgkmcnt(2)""")
    addrs(P0); loads(2, 0); loads(3, 1)
    p.label("L_pro_done")
    p(f"""ds_read_b128 {v(IDX,4)}, v{LRD} offset:8192
    v_add_u32 v{LRD}, {3*4096}, v{LRD}
    v_add_u32 v{SRD_}, {2*4096}, v{SRD_}
    s_cmp_lg_u32 s{MODE}, 0
    s_cbranch_scc1 L_nozero""")
    for i in range(64): p(f"v_mov_b32 v{ACC+i}, 0")
    p.label("L_nozero")
    stamp(8)
    p(f"s_call_b64 s[{LINK}:{LINK+1}], L_agg")
    p("s_branch L_round_end")
    p.label("L_round_done")
    p(f"""s_waitcnt lgkmcnt(0)
    s_cmp_lg_u32 s{MODE}, 0
    s_cbranch_scc1 L_round_end""")
    for i in range(64): p(f"v_mov_b32 v{ACC+i}, 0")
    p.label("L_round_end")
    p(f"""s_cmp_lg_u32 s{MODE}, 0
    s_cbranch_scc1 L_slow_next""")
    p.label("L_A_tail")
    stamp(9)
    p(f"""s_waitcnt lgkmcnt(0)
    v_lshlrev_b32 v{DISD}, 16, v{DISD}
    s_nop 4""")
    for i in range(32):
        p(f"v_pk_mul_f32 {v(ACC+2*i,2)}, {v(ACC+2*i,2)}, {v(DISD,2)} op_sel_hi:[1,0]")
    p(f"s_call_b64 s[{LINK}:{LINK+1}], L_wout")
    signal(S_AL)
    stamp(10)
    p("s_branch L_final")

    p.label("L_slow_enter")
    for i in range(64): p(f"v_mov_b32 v{ACC+i}, 0")
    srd(SRD_SRC, 6, 640000)
    srd(SRD_DST, 8, 640000)
    p(f"s_mov_b32 s{MODE}, 0")
    p.label("L_slow_next")
    p(f"""s_cmp_eq_u32 s{MODE}, 625
    s_cbranch_scc1 L_A_tail
    s_lshl_b32 s{T0}, s{MODE}, 10
    s_add_u32 s{MODE}, s{MODE}, 1
    v_lshl_add_u32 v{AT}, s{W}, 6, v{LANE}
    v_lshlrev_b32 v{AT}, 2, v{AT}
    buffer_load_dword v{EN}, v{AT}, s[{SRD_SRC}:{SRD_SRC+3}], s{T0} offen
    buffer_load_dword v{EN+1}, v{AT}, s[{SRD_DST}:{SRD_DST+3}], s{T0} offen
    v_lshrrev_b32 v{AT}, 4, v{LANE}
    s_lshl_b32 s{T0}, s{W}, 8
    s_add_u32 s{T0}, s{T0}, {SIMG}
    v_lshl_add_u32 v{SRD_}, v{AT}, 10, v{CG16}
    v_add_u32 v{SRD_}, s{T0}, v{SRD_}
    v_or_b32 v{LRD}, 240, v{SRD_}
    s_waitcnt lgkmcnt(0)
    s_call_b64 s[{LINK}:{LINK+1}], L_init
    s_add_u32 s{TR}, s{TR}, 4""")
    signal(S_R)
    semwait(S_R, f"s{TR}", AT)
    p(f"""s_mul_i32 s{T0}, s2, 40
    s_waitcnt vmcnt(0)
    v_subrev_u32 v{EN+1}, s{T0}, v{EN+1}
    v_cmp_gt_u32 vcc, 40, v{EN+1}
    v_mul_u32_u24 v{AT}, 26, v{EN+1}
    v_lshrrev_b32 v{AT}, 8, v{AT}
    v_mad_u32_u24 v{AT}, v{AT}, 6, v{EN+1}
    v_lshl_or_b32 v{AT}, v{AT}, 14, v{EN}
    v_mov_b32 v{EN+1}, {EMPTY}
    v_cndmask_b32_e64 v{EN}, v{EN+1}, v{AT}, vcc""")
    for k in range(2, 8): p(f"v_mov_b32 v{EN+k}, {EMPTY}")
    p(f"""v_mov_b32 v{DV+9}, 0
    s_mov_b32 s{T2}, 0
    s_branch L_fill""")

    p.label("L_init")
    p(f"""v_and_b32 v{AT}, 15, v{LANE}
    v_cmp_eq_u32 vcc, 15, v{AT}
    s_lshl_b32 s{T0}, s{W}, 2
    s_add_u32 s{T0}, s{T0}, s{CCNT}
    v_mov_b32 v{AT+1}, s{T0}
    v_cndmask_b32_e64 v{S0}, 0, -1, vcc
    v_cndmask_b32_e64 v{S0+1}, 0, -1, vcc
    v_cndmask_b32_e64 v{S0+2}, 0, -1, vcc
    v_cndmask_b32_e64 v{S0+3}, 0, -1, vcc
    ds_write_b32 v{AT+1}, v{ZERO}""")
    for k in range(8): p(f"ds_write_b128 v{SRD_}, {v(S0,4)} offset:{k*4096}")
    p(f"s_setpc_b64 s[{LINK}:{LINK+1}]")

    p.label("L_wout")
    p("""s_nop 7
    s_mov_b32 exec_lo, 0x03ff03ff
    s_mov_b32 exec_hi, 0x03ff03ff""")
    for h in range(2):
        for r in range(4):
            d = P0 if r % 2 == 0 else P1
            for k in range(4):
                p(f"v_cvt_pk_bf16_f32 v{d+k}, v{ACC+(8*h+2*k)*4+r}, v{ACC+(8*h+2*k+1)*4+r}")
            p(f"ds_write_b128 v{FW}, {v(d,4)} offset:{(4*h+r)*2560}")
    p(f"""s_mov_b64 exec, -1
    s_setpc_b64 s[{LINK}:{LINK+1}]""")

    def perms(u, t, P):
        for q in range(4):
            p(f"v_perm_b32 v{P+q}, v{H[u]+4*(2*q+1)+(t>>1)}, v{H[u]+4*(2*q)+(t>>1)}, s{SEL1 if t&1 else SEL0}")
    def CB(u, S):
        h = u & 1
        perms(u, 0, P0)
        for t in range(8):
            if t < 7: perms(u, t+1, P1 if t % 2 == 0 else P0)
            a = ACC + (8*h + t)*4
            p(f"v_mfma_f32_16x16x32_bf16 {v(a,4)}, {v(P0 if t % 2 == 0 else P1,4)}, {v(S,4)}, {v(a,4)}")
    p.label("L_agg")
    for pi in range(2):
        S = S0 if pi == 0 else S1
        L1, L2, L3, L4, L5 = newl("a"), newl("a"), newl("a"), newl("a"), newl("a")
        p(f"""s_cmp_eq_u32 s{RHO}, 0
        s_waitcnt vmcnt(24) lgkmcnt(1)
        s_cbranch_scc0 {L1}
        s_waitcnt vmcnt(8)""")
        p.label(L1)
        CB(2*pi, S)
        p(f"""s_cmp_lt_u32 s{RHO}, 2
        s_cbranch_scc1 {L2}
        s_waitcnt lgkmcnt(0)""")
        addrs(IDX); loads(2*pi, 0)
        p(f"""ds_read_b128 {v(IDX,4)}, v{LRD}
        v_add_u32 v{LRD}, 4096, v{LRD}
        s_waitcnt vmcnt(24)
        s_branch {L3}""")
        p.label(L2)
        p(f"""s_cmp_eq_u32 s{RHO}, 0
        s_waitcnt vmcnt(16)
        s_cbranch_scc0 {L3}
        s_waitcnt vmcnt(0)""")
        p.label(L3)
        CB(2*pi+1, S)
        p(f"""s_cmp_lt_u32 s{RHO}, 2
        s_cbranch_scc1 {L4}""")
        loads(2*pi+1, 1)
        p(f"""ds_read_b128 {v(S,4)}, v{SRD_}
        v_add_u32 v{SRD_}, 4096, v{SRD_}""")
        p.label(L4)
        p(f"""s_cmp_eq_u32 s{RHO}, 0
        s_cbranch_scc1 L_agg_ret
        s_sub_u32 s{RHO}, s{RHO}, 1""")
        if pi == 1: p("s_branch L_agg")
    p.label("L_agg_ret")
    p(f"s_setpc_b64 s[{LINK}:{LINK+1}]")

    p.label("L_final")
    p(f"""v_lshrrev_b32 v4, 5, v{LANE}
    s_lshl_b32 s{T0}, s{WV}, 1
    v_add_u32 v4, s{T0}, v4
    v_and_b32 v5, 31, v{LANE}
    v_lshrrev_b32 v6, 3, v5
    v_xor_b32 v7, v4, v5
    v_and_b32 v7, 7, v7
    v_lshlrev_b32 v7, 4, v7
    v_lshl_add_u32 v7, v4, 7, v7
    v_lshl_add_u32 v7, v6, 14, v7
    v_lshrrev_b32 v6, 1, v6
    v_lshl_add_u32 v7, v6, 7, v7
    v_lshlrev_b32 v5, 4, v5
    v_lshl_add_u32 v5, v4, 9, v5
    s_mul_i32 s{T0}, s2, 20480
    s_add_u32 s{T1}, s{T0}, 8192
    s_add_u32 s{T2}, s{T0}, 16384
    s_waitcnt lgkmcnt(0)
    s_barrier
    ds_read_b128 v[8:11], v7 offset:{RING}
    ds_read_b128 v[12:15], v7 offset:{RING+2048}
    s_cmp_ge_u32 s{WV}, 4
    s_cbranch_scc1 L_fin2
    ds_read_b128 v[16:19], v7 offset:{RING+4096}
    s_waitcnt lgkmcnt(0)
    buffer_store_dwordx4 v[16:19], v5, s[{SRD_OUT}:{SRD_OUT+3}], s{T2} offen""")
    p.label("L_fin2")
    p(f"""s_waitcnt lgkmcnt(0)
    buffer_store_dwordx4 v[8:11], v5, s[{SRD_OUT}:{SRD_OUT+3}], s{T0} offen
    buffer_store_dwordx4 v[12:15], v5, s[{SRD_OUT}:{SRD_OUT+3}], s{T1} offen""")
    stamp(11)
    stamp_out()
    p("s_endpgm")

    p.label("L_upd")
    p(f"""s_cmp_lg_u32 s{WV}, 0
    s_cbranch_scc1 L_end
    s_waitcnt lgkmcnt(0)
    global_load_dword v15, v{ZERO}, s[28:29] sc1
    s_add_u32 s60, s28, {SLOT0 + NWG*8192}
    s_addc_u32 s61, s29, 0
    s_mov_b32 s62, 8192
    s_mov_b32 s63, 0x20000
    v_lshlrev_b32 v4, 4, v{LANE}
    s_movk_i32 s{T1}, 4096
    s_waitcnt vmcnt(0)
    v_readfirstlane_b32 s64, v15
    s_lshr_b32 s64, s64, 20
    s_add_u32 s65, s64, {TAGINC}
    s_lshl_b32 s65, s65, 20""")
    p.label("L_upd_poll")
    for k in range(8):
        p(f"buffer_load_dwordx4 {v(16+4*k,4)}, v4, s[60:63], {'0' if k < 4 else 's%d' % T1} offen offset:{(k&3)*1024} sc1")
    p("s_waitcnt vmcnt(0)")
    for k in range(32): p(f"v_xor_b32 v{16+k}, s65, v{16+k}")
    for k in range(1, 31, 2): p(f"v_max3_u32 v16, v16, v{16+k}, v{17+k}")
    p(f"""v_max_u32 v16, v16, v47
    v_cmp_lt_u32 vcc, 0xfffff, v16
    s_cmp_eq_u64 vcc, 0
    s_cbranch_scc1 L_upd_go
    s_add_u32 s93, s93, 16
    s_cmp_ge_u32 s93, {SPIN_MAX}
    s_cbranch_scc1 L_end
    s_sleep 8
    s_branch L_upd_poll""")
    p.label("L_upd_go")
    p(f"""s_or_b32 s64, s64, 0x10000
    v_mov_b32 v5, s64
    v_mov_b32 v6, s65
    s_mov_b64 exec, 1
    global_store_dword v{ZERO}, v5, s[26:27] sc0 sc1
    s_waitcnt vmcnt(0)
    global_store_dword v{ZERO}, v6, s[28:29] sc0 sc1""")
    p.label("L_end")
    p("s_endpgm")

    a, b = p.finish()
    hdr = open(os.path.join(os.path.dirname(os.path.abspath(__file__)), "header.txt")).read()
    out = hdr + f"; @launch grid=({NWG+1},1,1) block=(512,1,1) lds={LDS_TOTAL}\n"
    out += f""".amdgcn_target "amdgcn-amd-amdhsa--gfx950"
.text
.globl {KNAME}
.p2align 8
.type {KNAME},@function
{KNAME}:
"""
    out += p.text()
    out += f""".section .rodata,"a"
.p2align 6
.amdhsa_kernel {KNAME}
  .amdhsa_next_free_vgpr 256
  .amdhsa_next_free_sgpr 102
  .amdhsa_accum_offset 256
  .amdhsa_group_segment_fixed_size 0
  .amdhsa_kernarg_size 104
  .amdhsa_user_sgpr_count 2
  .amdhsa_user_sgpr_kernarg_segment_ptr 1
  .amdhsa_system_sgpr_workgroup_id_x 1
  .amdhsa_float_denorm_mode_32 3
.end_amdhsa_kernel
"""
    sys.stderr.write(f"auto nops: linear {a}, edges {b}; {sum(1 for i in p.ins if i.states)} instructions\n")
    return out

if __name__ == "__main__":
    import argparse
    ap = argparse.ArgumentParser()
    ap.add_argument("-o", default="gather_scatter__hybrid_graph_tf_exphormer__graph.s")
    ap.add_argument("--stamps", action="store_true")
    ap.add_argument("--dbgstamps", action="store_true")
    ap.add_argument("--force-slow", action="store_true")
    ap.add_argument("--slot-cap", type=int, default=31)
    a = ap.parse_args()
    Opt.stamps = a.stamps or a.dbgstamps; Opt.dbgstamps = a.dbgstamps; Opt.force_slow = a.force_slow; Opt.slot_cap = a.slot_cap
    open(a.o, "w").write(build())
```

```python
import sys, os
sys.path.insert(0, os.path.dirname(os.path.abspath(__file__)))
from asmlib import Prog

KNAME = "gather_scatter__hybrid_graph_tf_exphormer__graph_kernel"

SEM = 0
RING = 256
XB = RING + 65536
YB = XB + 20480
ZB = YB + 20480
IMG = ZB
DIS = ZB
SIMG = ZB + 20480
LDS_TOTAL = SIMG + 32768
S_X, S_Q, S_QK, S_AA, S_AL, S_CPY, S_I, S_L, CNT, S_R = 0, 4, 8, 12, 16, 20, 24, 28, 32, 48
assert IMG + 32768 <= LDS_TOTAL and LDS_TOTAL <= 163840

NWG = 250
NPROD = 64
SLOT0 = 65536
STAMP0 = 8 << 20
EMPTY = 0xFC000
TAGINC = 0x2C5
SPIN_MAX = 1 << 21

def v(n, c=1): return f"v{n}" if c == 1 else f"v[{n}:{n+c-1}]"
def s(n, c=1): return f"s{n}" if c == 1 else f"s[{n}:{n+c-1}]"

class Opt:
    stamps = False
    dbgstamps = False
    stretch = None
    force_slow = False
    slot_cap = 31

def build(opt=Opt):
    p = Prog()
    lbl = [0]
    def newl(n):
        lbl[0] += 1
        return f"L_{n}_{lbl[0]}"

    TID, LANE, ZERO, ONE = 0, 1, 2, 3
    SEMA = ZERO
    WV, LINK, W = 3, 30, 32
    T0, T1, T2 = 33, 34, 35
    SRD_X, SRD_OUT, SRD_SRC, SRD_DST = 36, 40, 44, 48
    STAMP = 90

    nstamp = [0]
    def stamp(slot):
        if not opt.stamps: return
        p(f"""s_memrealtime s[90:91]
        s_waitcnt lgkmcnt(0)
        v_writelane_b32 v0, s90, {slot}""")
    def stamp_out():
        if not opt.stamps: return
        p(f"""s_lshl_b32 s92, s2, 3
        s_add_u32 s92, s92, s{WV}
        s_lshl_b32 s92, s92, 7
        s_add_u32 s92, s92, {STAMP0}
        v_lshlrev_b32 v20, 2, v{LANE}
        v_add_u32 v20, s92, v20
        s_mov_b32 exec_hi, 0
        global_store_dword v20, v0, s[28:29]
        s_mov_b64 exec, -1""")
        if opt.dbgstamps:
            L = newl("dbg")
            p(f"""s_and_b32 s90, s{WV}, 3
            s_cmp_lg_u32 s90, 0
            s_cbranch_scc1 {L}
            s_and_b32 s90, s2, 127
            s_cmp_lg_u32 s90, 100
            s_cbranch_scc1 {L}
            v_readlane_b32 s90, v0, 0
            s_nop 3
            v_subrev_u32 v21, s90, v0
            v_lshrrev_b32 v21, 4, v21
            v_min_u32 v21, 255, v21
            s_lshr_b32 s90, s{WV}, 2
            s_mul_i32 s90, s90, 12
            s_add_u32 s90, s90, 4
            s_lshr_b32 s91, s2, 7
            s_mul_i32 s91, s91, 24
            s_add_u32 s90, s90, s91
            v_add_u32 v22, s90, v{LANE}
            s_mov_b64 exec, 0xfff
            global_store_byte v22, v21, s[26:27]
            s_mov_b64 exec, -1""")
            p.label(L)

    def stretch():
        if not opt.stretch: return
        wv, sa, sb, mult = opt.stretch
        L = newl("st"); L2 = newl("st")
        p(f"""s_cmp_lg_u32 s2, 100
        s_cbranch_scc1 {L}
        s_cmp_lg_u32 s{WV}, {wv}
        s_cbranch_scc1 {L}
        v_readlane_b32 s90, v0, {sa}
        v_readlane_b32 s91, v0, {sb}
        v_readlane_b32 s94, v0, 11
        s_sub_u32 s90, s91, s90
        s_mul_i32 s90, s90, {mult}
        s_min_u32 s90, s90, 200000""")
        p.label(L2)
        p(f"""s_memrealtime s[96:97]
        s_waitcnt lgkmcnt(0)
        s_sub_u32 s96, s96, s94
        s_cmp_lt_u32 s96, s90
        s_cbranch_scc1 {L2}""")
        p.label(L)

    def srd(base, ptr, size):
        p(f"""s_mov_b32 s{base}, s{ptr}
        s_mov_b32 s{base+1}, s{ptr+1}
        s_mov_b32 s{base+2}, {size}
        s_mov_b32 s{base+3}, 0x20000""")

    def signal(off, val=ONE):
        p(f"""s_mov_b64 exec, 1
        ds_add_u32 v{SEMA}, v{val} offset:{off}
        s_mov_b64 exec, -1""")

    def semwait(off, target, tmpv, mask=None, keep=None):
        L = newl("sw")
        p.label(L)
        p(f"""ds_read_b32 v{tmpv}, v{SEMA} offset:{off}
        s_waitcnt lgkmcnt(0)
        v_readfirstlane_b32 s{T0}, v{tmpv}""")
        if keep is not None: p(f"s_mov_b32 s{keep}, s{T0}")
        if mask is not None: p(f"s_and_b32 s{T0}, s{T0}, {mask}")
        L2 = newl("sd")
        p(f"""s_cmp_ge_u32 s{T0}, {target}
        s_cbranch_scc1 {L2}
        s_add_u32 s93, s93, 1
        s_cmp_lt_u32 s93, {SPIN_MAX}
        s_cbranch_scc1 {L}
        s_endpgm""")
        p.label(L2)

    p(f"""s_cmp_gt_u32 s2, {NWG}
    s_cbranch_scc1 L_end
    s_load_dwordx16 s[4:19], s[0:1], 0
    s_load_dwordx8 s[20:27], s[0:1], 64
    s_load_dwordx2 s[28:29], s[0:1], 96
    v_lshrrev_b32 v4, 6, v0
    v_and_b32 v{LANE}, 63, v0
    v_readfirstlane_b32 s{WV}, v4
    v_mov_b32 v{ZERO}, 0
    v_mov_b32 v{ONE}, 1
    s_mov_b32 s93, 0
    v_lshlrev_b32 v4, 2, v{LANE}
    s_cmp_eq_u32 s2, {NWG}
    s_cbranch_scc1 L_upd
    ds_write_b32 v4, v{ZERO}
    s_and_b32 s{W}, s{WV}, 3
    s_cmp_ge_u32 s2, {NPROD}
    s_cbranch_scc1 L_noimg
    v_mov_b32 v8, {EMPTY}
    v_mov_b32 v9, {EMPTY}
    v_mov_b32 v10, {EMPTY}
    v_mov_b32 v11, {EMPTY}
    v_lshlrev_b32 v4, 4, v0
    v_add_u32 v4, {IMG}, v4
    ds_write_b128 v4, v[8:11]
    ds_write_b128 v4, v[8:11] offset:8192
    ds_write_b128 v4, v[8:11] offset:16384
    ds_write_b128 v4, v[8:11] offset:24576
    v_lshlrev_b32 v4, 2, v0
    s_mul_i32 s{T0}, s2, 10000
    s_movk_i32 s{T1}, 4096
    s_movk_i32 s{T2}, 8192
    s_waitcnt lgkmcnt(0)""")
    BD, BS, BB, BH, BR, BT = 200, 205, 210, 215, 220, 225
    p(f"""s_add_u32 s{SRD_DST}, s8, s{T0}
    s_addc_u32 s{SRD_DST+1}, s9, 0
    s_mov_b32 s{SRD_DST+2}, 10000
    s_mov_b32 s{SRD_DST+3}, 0x20000
    s_add_u32 s{SRD_SRC}, s6, s{T0}
    s_addc_u32 s{SRD_SRC+1}, s7, 0
    s_mov_b32 s{SRD_SRC+2}, 10000
    s_mov_b32 s{SRD_SRC+3}, 0x20000""")
    for i, (so, im) in enumerate([("0", 0), ("0", 2048), (f"s{T1}", 0), (f"s{T1}", 2048), (f"s{T2}", 0)]):
        p(f"buffer_load_dword v{BD+i}, v4, s[{SRD_DST}:{SRD_DST+3}], {so} offen offset:{im}")
    for i, (so, im) in enumerate([("0", 0), ("0", 2048), (f"s{T1}", 0), (f"s{T1}", 2048), (f"s{T2}", 0)]):
        p(f"buffer_load_dword v{BS+i}, v4, s[{SRD_SRC}:{SRD_SRC+3}], {so} offen offset:{im}")
    p.label("L_noimg")
    p("s_waitcnt lgkmcnt(0)")
    if opt.stamps: p('v_mov_b32 v0, 0')
    stamp(0)
    srd(SRD_X, 4, 5120000)
    srd(SRD_OUT, 24, 5120000)
    p(f"""s_cmp_ge_u32 s{WV}, 4
    s_cbranch_scc1 L_A""")

    DC, DK, DT = 4, 8, 12
    VT, VK, VB, VF01, VF2 = 16, 20, 22, 26, 27
    VQ01, VQ2, VQK, VOUT = 28, 29, 30, 34
    GT = 38
    PA, PB, QA, QB = 48, 64, 76, 92
    ACC1, ACC2 = 104, 152
    SRD_W, SRD_PF, SOFF, RB, IT = 52, 56, 60, 64, 65
    J, G4 = 240, 241

    p(f"""s_cmp_eq_u32 s{W}, 1
    s_cselect_b64 s[{SRD_PF}:{SRD_PF+1}], s[20:21], s[18:19]
    s_cmp_eq_u32 s{W}, 2
    s_cselect_b64 s[{SRD_PF}:{SRD_PF+1}], s[22:23], s[{SRD_PF}:{SRD_PF+1}]
    s_cmp_eq_u32 s{W}, 3
    s_cselect_b64 s[{SRD_PF}:{SRD_PF+1}], s[16:17], s[{SRD_PF}:{SRD_PF+1}]
    s_mov_b32 s{SRD_PF+2}, 131072
    s_mov_b32 s{SRD_PF+3}, 0x20000
    s_lshr_b32 s{T0}, s2, 3
    s_and_b32 s{T0}, s{T0}, 31
    s_lshl_b32 s{T0}, s{T0}, 12
    v_lshlrev_b32 v{GT}, 7, v{LANE}
    s_mov_b32 exec_hi, 0
    buffer_load_dword v{GT+1}, v{GT}, s[{SRD_PF}:{SRD_PF+3}], s{T0} offen
    s_mov_b32 exec_hi, -1""")
    stamp(12)
    p(f"""v_lshrrev_b32 v{GT+2}, 5, v{LANE}
    s_mul_i32 s{T0}, s{W}, 10
    v_add_u32 v{GT+2}, s{T0}, v{GT+2}
    v_and_b32 v{GT+3}, 31, v{LANE}
    s_mul_i32 s{T1}, s2, 20480
    s_mul_i32 s{T2}, s{W}, 5120
    s_add_u32 s{T2}, s{T2}, {XB}""")
    for k in range(5):
        p(f"""v_and_b32 v{GT+4}, 15, v{GT+2}
        v_xor_b32 v{GT+4}, v{GT+4}, v{GT+3}
        v_lshlrev_b32 v{GT+4}, 4, v{GT+4}
        v_lshl_add_u32 v{GT+4}, v{GT+2}, 9, v{GT+4}
        s_add_u32 m0, s{T2}, {k*1024}
        v_add_u32 v{GT+2}, 2, v{GT+2}
        buffer_load_dwordx4 v{GT+4}, s[{SRD_X}:{SRD_X+3}], s{T1} offen lds""")
    p(f"""v_lshrrev_b32 v{GT}, 3, v{LANE}
    v_and_b32 v{GT+2}, 7, v{LANE}
    v_and_b32 v{GT+3}, 2, v{GT}
    v_xor_b32 v{GT+3}, v{GT+3}, v{GT+2}
    v_lshlrev_b32 v{GT+4}, 9, v{GT}
    s_lshl_b32 s{T0}, s{W}, 7
    v_add_u32 v{GT+4}, s{T0}, v{GT+4}
    v_lshl_add_u32 v{DT}, v{GT+3}, 4, v{GT+4}
    v_xor_b32 v{GT+3}, 4, v{GT+3}
    v_lshl_add_u32 v{DT+1}, v{GT+3}, 4, v{GT+4}
    v_add_u32 v{DT+2}, {2*15360}, v{DT}
    v_add_u32 v{DT+3}, {3*15360}, v{DT+1}
    v_add_u32 v{DT+1}, {15360}, v{DT+1}
    s_lshl_b32 s{RB}, s{W}, 14
    s_add_u32 s{RB}, s{RB}, {RING}""")
    p(f"""s_mov_b32 s{SRD_W}, s18
    s_mov_b32 s{SRD_W+1}, s19
    s_mov_b32 s{SRD_W+2}, 131072
    s_mov_b32 s{SRD_W+3}, 0x20000""")

    def set_soff_T(h):
        for j in range(4): p(f"s_mov_b32 s{SOFF+j}, {j*4096 + h*65536}")
    def set_soff_K(b):
        for j in range(4): p(f"s_mov_b32 s{SOFF+j}, {(j>>1)*128 + (j&1)*16384 + b*256}")
    def issue(j, regs=DC):
        p(f"s_add_u32 m0, s{RB}, {j*4096}")
        for g in range(4):
            p(f"buffer_load_dwordx4 v{regs+g}, s[{SRD_W}:{SRD_W+3}], s{SOFF+j} offen offset:{g*1024} lds")
    set_soff_T(0)
    for j in range(4): issue(j, DT)
    stamp(13)
    p(f"""v_lshrrev_b32 v{GT+3}, 1, v{GT}
    v_xor_b32 v{GT+3}, v{GT+3}, v{GT+2}
    s_lshl_b32 s{T0}, s{W}, 15
    v_lshlrev_b32 v{GT+4}, 9, v{GT}
    v_add_u32 v{GT+4}, s{T0}, v{GT+4}
    v_lshl_add_u32 v{DK}, v{GT+3}, 4, v{GT+4}
    v_xor_b32 v{GT+3}, 4, v{GT+3}
    v_lshl_add_u32 v{DK+1}, v{GT+3}, 4, v{GT+4}
    v_add_u32 v{DK+2}, {2*3072}, v{DK}
    v_add_u32 v{DK+3}, {3*3072}, v{DK+1}
    v_add_u32 v{DK+1}, {3072}, v{DK+1}""")
    for g in range(4): p(f"v_mov_b32 v{DC+g}, v{DT+g}")
    p(f"""v_and_b32 v{J}, 15, v{LANE}
    v_lshrrev_b32 v{G4}, 4, v{LANE}""")
    p(f"""v_bfe_u32 v{GT}, v{LANE}, 2, 2
    v_and_b32 v{GT+2}, 3, v{LANE}
    v_lshlrev_b32 v{GT+3}, 10, v{G4}
    v_lshl_add_u32 v{GT+3}, v{GT}, 7, v{GT+3}
    v_lshl_add_u32 v{GT+3}, v{GT+2}, 3, v{GT+3}
    v_add_u32 v{GT+3}, s{RB}, v{GT+3}
    v_and_b32 v{GT+4}, 1, v{G4}
    v_lshlrev_b32 v{GT+4}, 1, v{GT+4}
    v_lshrrev_b32 v{GT}, 1, v{GT}
    v_or_b32 v{GT+4}, v{GT+4}, v{GT}""")
    for t in range(4):
        p(f"""v_xor_b32 v{GT}, {t}, v{GT+4}
        v_lshl_add_u32 v{VT+t}, v{GT}, 5, v{GT+3}""")
    p(f"""v_lshrrev_b32 v{GT}, 3, v{J}
    v_and_b32 v{GT+2}, 7, v{J}
    v_lshlrev_b32 v{GT}, 10, v{GT}
    v_lshl_add_u32 v{GT}, v{GT+2}, 7, v{GT}
    v_add_u32 v{GT}, s{RB}, v{GT}
    v_lshrrev_b32 v{GT+3}, 1, v{J}
    v_xor_b32 v{GT+3}, v{GT+3}, v{G4}
    v_lshl_add_u32 v{VK}, v{GT+3}, 4, v{GT}
    v_xor_b32 v{GT+3}, 4, v{GT+3}
    v_lshl_add_u32 v{VK+1}, v{GT+3}, 4, v{GT}""")
    p(f"""v_lshlrev_b32 v{GT}, 9, v{J}
    v_add_u32 v{GT}, {XB}, v{GT}
    v_lshlrev_b32 v{GT+3}, 2, v{G4}
    v_xor_b32 v{GT+3}, v{GT+3}, v{J}""")
    for r in range(4):
        p(f"""v_xor_b32 v{GT+4}, {r}, v{GT+3}
        v_lshl_add_u32 v{VB+r}, v{GT+4}, 4, v{GT}""")
    p(f"""v_lshlrev_b32 v{GT+3}, 4, v{J}
    v_lshl_add_u32 v{VF01}, v{G4}, 8, v{GT+3}
    v_add_u32 v{VF01}, {YB}, v{VF01}
    v_lshlrev_b32 v{GT+3}, 4, v{GT+2}
    v_lshl_add_u32 v{VF2}, v{G4}, 7, v{GT+3}
    v_add_u32 v{VF2}, {YB+2048}, v{VF2}""")
    p(f"""v_lshrrev_b32 v{GT+4}, 1, v{G4}
    v_and_b32 v{GT+5}, 1, v{G4}
    v_lshlrev_b32 v{GT+5}, 3, v{GT+5}
    s_mul_i32 s{T0}, s{W}, 5120
    s_add_u32 s{T0}, s{T0}, {YB}
    v_lshl_add_u32 v{GT+6}, v{J}, 4, v{GT+5}
    v_lshl_add_u32 v{GT+6}, v{GT+4}, 8, v{GT+6}
    v_add_u32 v{VQ01}, s{T0}, v{GT+6}
    v_add_u32 v{GT+6}, v{GT+3}, v{GT+5}
    v_lshl_add_u32 v{GT+6}, v{GT+4}, 7, v{GT+6}
    s_add_u32 s{T0}, s{T0}, 2048
    v_add_u32 v{VQ2}, s{T0}, v{GT+6}""")
    p(f"""s_lshl_b32 s{T0}, s{W}, 7
    v_add_u32 v{GT}, s{T0}, v{GT}
    v_add_u32 v{GT}, v{GT}, v{GT+5}
    s_lshr_b32 s{T0}, s{W}, 1
    s_lshl_b32 s{T0}, s{T0}, 7
    s_add_u32 s{T0}, s{T0}, s{RB}
    v_lshl_add_u32 v{GT+6}, v{J}, 7, v{GT+5}
    v_add_u32 v{GT+6}, s{T0}, v{GT+6}
    v_xor_b32 v{GT+4}, v{GT+4}, v{GT+2}""")
    for t in range(4):
        p(f"""v_xor_b32 v{GT+3}, {2*t}, v{GT+4}
        v_lshl_add_u32 v{VQK+t}, v{GT+3}, 4, v{GT}
        v_lshl_add_u32 v{VOUT+t}, v{GT+3}, 4, v{GT+6}""")
    for i in range(48): p(f"v_mov_b32 v{ACC1+i}, 0")
    for i in range(48): p(f"v_mov_b32 v{ACC2+i}, 0")
    stamp(14)
    p(f"""s_waitcnt lgkmcnt(0)
    s_barrier""")
    stamp(15)
    p(f"""s_cmp_ge_u32 s2, {NPROD}
    s_cbranch_scc1 L_G_nobin
    s_waitcnt vmcnt(22)""")
    stamp(16)
    p(f"""s_call_b64 s[{LINK}:{LINK+1}], L_bin""")
    stamp(17)
    p.label("L_G_nobin")
    if opt.stamps:
        p("s_waitcnt vmcnt(21)")
        stamp(18)
    p("s_waitcnt vmcnt(16)")
    signal(S_X)
    stamp(1)
    semwait(S_X, 4, GT)
    stamp(2)

    def acc(base, t, T): return base + (t*3 + T)*4
    def mfmas(base, A, B):
        for t in range(4):
            for T in range(3):
                a = acc(base, t, T)
                p(f"v_mfma_f32_16x16x32_bf16 {v(a,4)}, {v(A+4*t,4)}, {v(B+4*T,4)}, {v(a,4)}")
    def read_T(j, A):
        for t in range(4):
            p(f"ds_read_b64_tr_b16 {v(A+4*t,2)}, v{VT+t} offset:{j*4096}")
            p(f"ds_read_b64_tr_b16 {v(A+4*t+2,2)}, v{VT+t} offset:{j*4096+512}")
    def read_Bx(r, B):
        for T in range(3): p(f"ds_read_b128 {v(B+4*T,4)}, v{VB+r} offset:{T*8192}")
    def read_Bf(r, B):
        p(f"ds_read_b128 {v(B,4)}, v{VF01} offset:{r*2560}")
        p(f"ds_read_b128 {v(B+4,4)}, v{VF01} offset:{r*2560+1024}")
        p(f"ds_read_b128 {v(B+8,4)}, v{VF2} offset:{r*2560}")
    sets = [(PA, PB), (QA, QB)]
    def bodyT(readB, base, last_cond=False):
        def W(n, nlast):
            p(f"s_waitcnt vmcnt({n})")
            if last_cond and nlast != n:
                L = newl("w")
                p(f"""s_cbranch_scc0 {L}
                s_waitcnt vmcnt({nlast})""")
                p.label(L)
        def I(j):
            if last_cond:
                L = newl("i")
                p(f"s_cbranch_scc1 {L}")
                issue(j)
                p(f"s_cmp_eq_u32 s{IT}, 3")
                p.label(L)
            else:
                issue(j)
        if last_cond: p(f"s_cmp_eq_u32 s{IT}, 3")
        W(12, 12); read_T(0, PA); readB(0, PB)
        W(8, 8); read_T(1, QA); readB(1, QB)
        p("s_waitcnt lgkmcnt(11)"); I(0); mfmas(base, PA, PB)
        W(8, 4); read_T(2, PA); readB(2, PB)
        p("s_waitcnt lgkmcnt(11)"); I(1); mfmas(base, QA, QB)
        W(8, 0); read_T(3, QA); readB(3, QB)
        p("s_waitcnt lgkmcnt(11)"); I(2); mfmas(base, PA, PB)
        p("s_waitcnt lgkmcnt(0)"); I(3); mfmas(base, QA, QB)

    def read_K(pi, kk, A):
        for t in range(4):
            p(f"ds_read_b128 {v(A+4*t,4)}, v{VK+kk} offset:{(2*pi + (t>>1))*4096 + (t&1)*2048}")
    def bodyK(base):
        p("s_waitcnt vmcnt(8)")
        read_K(0, 0, PA); read_Bf(0, PB)
        read_K(0, 1, QA); read_Bf(1, QB)
        p("s_waitcnt lgkmcnt(7)"); mfmas(base, PA, PB)
        p("s_waitcnt lgkmcnt(0)"); issue(0); issue(1)
        p("s_waitcnt vmcnt(8)")
        read_K(1, 0, PA); read_Bf(2, PB)
        mfmas(base, QA, QB)
        read_K(1, 1, QA); read_Bf(3, QB)
        p("s_waitcnt lgkmcnt(7)"); mfmas(base, PA, PB)
        p("s_waitcnt lgkmcnt(0)"); issue(2); issue(3)
        mfmas(base, QA, QB)

    def cvt_write(base, addr_of, mask_T2):
        k = 0
        for T in range(3):
            if T == 2 and mask_T2: p("s_mov_b32 exec_lo, 0x00ff00ff\ns_mov_b32 exec_hi, 0x00ff00ff")
            for t in range(4):
                a = acc(base, t, T); d = GT + 2*(k % 4); k += 1
                p(f"v_cvt_pk_bf16_f32 v{d}, v{a}, v{a+1}")
                p(f"v_cvt_pk_bf16_f32 v{d+1}, v{a+2}, v{a+3}")
                r, im = addr_of(t, T)
                p(f"ds_write_b64 v{r}, {v(d,2)} offset:{im}")
            if T == 2 and mask_T2: p("s_mov_b64 exec, -1")

    set_soff_T(1)
    p(f"s_mov_b32 s{IT}, 0")
    p.label("L_g1")
    bodyT(read_Bx, ACC1)
    p(f"""s_cmp_lg_u32 s{IT}, 0
    s_cbranch_scc1 L_g1_done
    s_mov_b32 s{IT}, 1
    s_mov_b32 s{SRD_W}, s20
    s_mov_b32 s{SRD_W+1}, s21""")
    set_soff_K(0)
    for g in range(4): p(f"v_mov_b32 v{DC+g}, v{DK+g}")
    for r in range(4): p(f"v_add_u32 v{VB+r}, 256, v{VB+r}")
    p("s_branch L_g1")
    p.label("L_g1_done")
    stamp(3)
    cvt_write(ACC1, lambda t, T: (VQ01, (t>>1)*2560 + (t&1)*512 + T*1024) if T < 2 else (VQ2, (t>>1)*2560 + (t&1)*256), True)
    signal(S_Q)
    for i in range(48): p(f"v_mov_b32 v{ACC1+i}, 0")
    set_soff_K(1)
    p(f"s_mov_b32 s{IT}, 0")
    semwait(S_Q, 4, GT)
    stamp(4)
    p.label("L_g2")
    bodyK(ACC2)
    p(f"""s_cmp_lg_u32 s{IT}, 0
    s_cbranch_scc1 L_g2_done
    s_mov_b32 s{IT}, 1
    s_mov_b32 s{SRD_W}, s22
    s_mov_b32 s{SRD_W+1}, s23""")
    set_soff_T(0)
    for g in range(4): p(f"v_mov_b32 v{DC+g}, v{DT+g}")
    p(f"""v_add_u32 v{VF01}, 10240, v{VF01}
    v_add_u32 v{VF2}, 10240, v{VF2}
    s_branch L_g2""")
    p.label("L_g2_done")
    stamp(5)
    cvt_write(ACC2, lambda t, T: (VQK+t, T*8192), True)
    signal(S_QK)
    p(f"""v_subrev_u32 v{VF01}, 10240, v{VF01}
    v_subrev_u32 v{VF2}, 10240, v{VF2}""")
    set_soff_T(1)
    p(f"s_mov_b32 s{IT}, 0")
    semwait(S_AA, 4, GT)
    stamp(6)
    p.label("L_g3")
    bodyT(read_Bf, ACC1, last_cond=True)
    p(f"""s_cbranch_scc1 L_g3_done
    s_add_u32 s{IT}, s{IT}, 1
    s_cmp_eq_u32 s{IT}, 2
    s_cbranch_scc1 L_g3_mid
    v_add_u32 v{VF01}, 10240, v{VF01}
    v_add_u32 v{VF2}, 10240, v{VF2}
    s_cmp_eq_u32 s{IT}, 3
    s_cbranch_scc1 L_g3
    s_mov_b32 s{SRD_W}, s16
    s_mov_b32 s{SRD_W+1}, s17""")
    set_soff_T(0)
    p("s_branch L_g3")
    p.label("L_g3_mid")
    p(f"""v_subrev_u32 v{VF01}, {10240 + YB - XB}, v{VF01}
    v_subrev_u32 v{VF2}, {10240 + YB - XB}, v{VF2}""")
    set_soff_T(1)
    stamp(7)
    semwait(S_AL, 4, GT)
    stamp(8)
    p("s_branch L_g3")
    p.label("L_g3_done")
    stamp(9)
    cvt_write(ACC1, lambda t, T: (VOUT+t, T*2048), False)
    p("s_branch L_final")

    p.label("L_bin")
    p(f"""s_movk_i32 s{T0}, -40
    s_mov_b32 s{T1}, {IMG}
    s_mov_b32 s{T2}, {EMPTY + opt.slot_cap}
    v_lshl_add_u32 v{BT}, s{WV}, 6, v{LANE}
    v_cmp_gt_u32 vcc, 452, v{BT}
    s_mov_b64 s[96:97], vcc""")
    for i in range(5):
        p(f"""v_mul_u32_u24 v{BB+i}, 52429, v{BD+i}
        v_lshrrev_b32 v{BB+i}, 21, v{BB+i}
        v_mad_i32_i24 v{BD+i}, v{BB+i}, s{T0}, v{BD+i}
        v_mul_u32_u24 v{BT}, 26, v{BD+i}
        v_lshrrev_b32 v{BT}, 8, v{BT}
        v_mad_u32_u24 v{BD+i}, v{BT}, 6, v{BD+i}
        v_and_b32 v{BT}, 31, v{BB+i}
        v_lshl_add_u32 v{BR+i}, v{BB+i}, 7, s{T1}
        v_lshl_add_u32 v{BH+i}, v{BT}, 2, v{BR+i}""")
        if i == 4: p("s_mov_b64 exec, s[96:97]")
        p(f"ds_add_rtn_u32 v{BH+i}, v{BH+i}, v{ONE}")
        p(f"v_lshl_or_b32 v{BS+i}, v{BD+i}, 14, v{BS+i}")
    p("s_mov_b64 exec, -1")
    for i in range(5):
        p(f"""s_waitcnt lgkmcnt(4)
        v_add3_u32 v{BT}, v{BB+i}, v{BH+i}, 1
        v_and_b32 v{BT}, 31, v{BT}
        v_lshl_add_u32 v{BT}, v{BT}, 2, v{BR+i}
        v_cmp_gt_u32 vcc, s{T2}, v{BH+i}""")
        if i == 4: p("s_and_b64 exec, vcc, s[96:97]")
        else: p("s_mov_b64 exec, vcc")
        p(f"""ds_write_b32 v{BT}, v{BS+i}
        s_mov_b64 exec, -1""")
    p(f"""s_waitcnt lgkmcnt(0)
    s_barrier
    s_setpc_b64 s[{LINK}:{LINK+1}]""")

    CG16, M0, M1, M2, QKA, FW, DISD, LRD, SRD_ = 4, 5, 6, 7, 8, 11, 12, 13, 14
    AD, IDX, S0, S1, P0, P1, EN, DV = 16, 24, 28, 32, 36, 40, 44, 52
    AT = 62
    ACC = 64
    H = [128, 160, 192, 224]
    SRD_E, SRD_DIS, SRD_WS = 52, 56, 60
    TAGP, TAGC, RHO, MODE, SEL0, SEL1, TL, TR = 64, 65, 66, 67, 68, 69, 70, 71
    MK = 72
    CDIS, CCNT, CSIMG, C512 = 88, 89, 98, 99
    p.label("L_A")
    p(f"""global_load_dword v15, v{ZERO}, s[28:29] sc1
    s_mov_b32 s{SRD_E}, s10
    s_mov_b32 s{SRD_E+1}, s11
    s_mov_b32 s{SRD_E+2}, 160000
    s_mov_b32 s{SRD_E+3}, 0x20000
    s_mul_i32 s{T0}, s2, 640
    s_mul_i32 s{T1}, s{W}, 160
    s_add_u32 s{T0}, s{T0}, s{T1}
    v_lshrrev_b32 v{AT}, 4, v{LANE}
    v_lshlrev_b32 v{AD}, 5, v{AT}
    v_lshlrev_b32 v{AD+1}, 3, v{AT}
    buffer_load_dwordx4 {v(EN,4)}, v{AD}, s[{SRD_E}:{SRD_E+3}], s{T0} offen
    buffer_load_dwordx4 {v(EN+4,4)}, v{AD}, s[{SRD_E}:{SRD_E+3}], s{T0} offen offset:16
    buffer_load_dwordx2 {v(DV,2)}, v{AD+1}, s[{SRD_E}:{SRD_E+3}], s{T0} offen offset:128""")
    srd(SRD_DIS, 14, 20000)
    p(f"""s_add_u32 s{SRD_WS}, s28, {SLOT0}
    s_addc_u32 s{SRD_WS+1}, s29, 0
    s_mov_b32 s{SRD_WS+2}, {256*8192}
    s_mov_b32 s{SRD_WS+3}, 0x20000
    s_mov_b32 s{SEL0}, 0x05040100
    s_mov_b32 s{SEL1}, 0x07060302
    s_mov_b32 s{CDIS}, {DIS}
    s_mov_b32 s{CCNT}, {SEM + CNT}
    s_mov_b32 s{CSIMG}, {SIMG}
    s_movk_i32 s{C512}, 512
    s_mov_b32 s{MODE}, 0
    s_mov_b32 s{TL}, 0
    s_mov_b32 s{TR}, 0""")
    p(f"""v_and_b32 v{AT+1}, 15, v{LANE}
    v_lshlrev_b32 v{CG16}, 4, v{AT+1}
    v_lshlrev_b32 v{P0}, 1, v{AT}
    v_cmp_eq_u32 vcc, v{P0}, v{AT+1}
    v_add_u32 v{P0+1}, 1, v{P0}
    v_cmp_eq_u32 s[72:73], v{P0+1}, v{AT+1}
    v_lshrrev_b32 v{P0+2}, 1, v{AT}
    v_add_u32 v{P0+2}, 8, v{P0+2}
    v_cmp_eq_u32 s[74:75], v{P0+2}, v{AT+1}
    v_cndmask_b32_e64 v{M0}, 0, -1, vcc
    v_cndmask_b32_e64 v{M1}, 0, -1, s[72:73]
    v_cndmask_b32_e64 v{M2}, 0, -1, s[74:75]
    s_mul_i32 s{T0}, s{W}, 10""")
    for e in range(3):
        p(f"""v_add_u32 v{P1}, s{T0}, v{P0+e}
        v_and_b32 v{P1+1}, 7, v{P1}
        v_xor_b32 v{P1+1}, v{P1+1}, v{AT+1}
        v_lshlrev_b32 v{P1+1}, 4, v{P1+1}
        v_lshl_add_u32 v{P1+1}, v{P1}, 9, v{P1+1}
        v_add_u32 v{QKA+e}, {XB}, v{P1+1}""")
    p(f"""v_add_u32 v{P1}, s{T0}, v{AT+1}
    v_and_b32 v{P1+1}, 15, v{P1}
    v_lshrrev_b32 v{P1+2}, 4, v{P1}
    v_lshlrev_b32 v{P1+2}, 10, v{P1+2}
    v_lshl_add_u32 v{P1+2}, v{P1+1}, 4, v{P1+2}
    v_lshl_add_u32 v{P1+3}, v{AT}, 8, v{P1+2}
    v_lshl_add_u32 v{P1+2}, v{AT}, 7, v{P1+2}
    v_cmp_gt_u32 vcc, 32, v{P1}
    s_mul_i32 s{T1}, s2, 40
    v_add_u32 v{DISD}, s{T1}, v{P1}
    v_cndmask_b32_e64 v{FW}, v{P1+2}, v{P1+3}, vcc
    v_add_u32 v{FW}, {YB}, v{FW}
    v_lshl_add_u32 v{DISD}, v{DISD}, 1, s{CDIS}""")
    stamp(14)
    p(f"""s_waitcnt lgkmcnt(0)
    s_barrier""")
    stamp(15)
    p(f"""s_cmp_ge_u32 s2, {NPROD}
    s_cbranch_scc1 L_A_nobin
    s_waitcnt vmcnt(4)""")
    stamp(16)
    p(f"""s_call_b64 s[{LINK}:{LINK+1}], L_bin""")
    stamp(17)
    p(f"""v_lshl_add_u32 v{P0}, s{W}, 6, v{LANE}
    v_lshlrev_b32 v{P0+1}, 4, v{P0}
    v_add_u32 v{P0+1}, {IMG}, v{P0+1}""")
    for k in range(8): p(f"ds_read_b128 {v(ACC+4*k,4)}, v{P0+1} offset:{k*4096}")
    p(f"""v_lshrrev_b32 v{P0+2}, 3, v{P0}
    v_and_b32 v{P0+3}, 7, v{P0}
    v_lshlrev_b32 v{P0+2}, 13, v{P0+2}
    v_lshlrev_b32 v{P0+3}, 4, v{P0+3}
    s_lshl_b32 s{T0}, s2, 7
    v_add3_u32 v{P0+2}, v{P0+2}, v{P0+3}, s{T0}
    s_waitcnt vmcnt(0)
    v_readfirstlane_b32 s{TAGP}, v15
    s_lshr_b32 s{TAGP}, s{TAGP}, 20
    s_add_u32 s{TAGP}, s{TAGP}, {TAGINC}
    s_lshl_b32 s{TAGP}, s{TAGP}, 20
    s_mov_b32 s{T0}, 0""")
    for k in range(8):
        p(f"s_waitcnt lgkmcnt({7-k})")
        for d in range(4): p(f"v_or_b32 v{ACC+4*k+d}, s{TAGP}, v{ACC+4*k+d}")
        p(f"buffer_store_dwordx4 {v(ACC+4*k,4)}, v{P0+2}, s[{SRD_WS}:{SRD_WS+3}], s{T0} offen sc1")
        if k < 7: p(f"s_add_u32 s{T0}, s{T0}, {32*8192}")
    signal(S_CPY)
    stamp(1)
    p("s_branch L_A_rows")
    p.label("L_A_nobin")
    p(f"""s_waitcnt vmcnt(0)
    v_readfirstlane_b32 s{TAGP}, v15
    s_lshr_b32 s{TAGP}, s{TAGP}, 20
    s_add_u32 s{TAGP}, s{TAGP}, {TAGINC}
    s_lshl_b32 s{TAGP}, s{TAGP}, 20""")
    p.label("L_A_rows")
    stamp(18)
    for i in range(8):
        p(f"""v_lshl_add_u32 v{AD+i}, v{EN+i}, 9, v{CG16}
        buffer_load_dwordx4 {v(H[0]+4*i,4)}, v{AD+i}, s[{SRD_X}:{SRD_X+3}], 0 offen
        buffer_load_dwordx4 {v(H[1]+4*i,4)}, v{AD+i}, s[{SRD_X}:{SRD_X+3}], 0 offen offset:256""")
    for i in range(2):
        p(f"""v_lshl_add_u32 v{IDX+i}, v{DV+i}, 9, v{CG16}
        buffer_load_dwordx4 {v(H[2]+8*i,4)}, v{IDX+i}, s[{SRD_X}:{SRD_X+3}], 0 offen
        buffer_load_dwordx4 {v(H[2]+8*i+4,4)}, v{IDX+i}, s[{SRD_X}:{SRD_X+3}], 0 offen offset:256""")
    p(f"global_load_dword v15, v{ZERO}, s[26:27] sc1")
    stamp(2)
    p(f"""s_cmp_ge_u32 s2, {NPROD}
    s_cbranch_scc1 L_A_nocpy""")
    semwait(S_CPY, 4, AT)
    p.label("L_A_nocpy")
    p(f"""v_lshlrev_b32 v{P0}, 4, v{LANE}
    s_mul_i32 s{T0}, s{W}, 5120
    s_add_u32 s{T1}, s{T0}, {DIS}""")
    for k in range(5):
        p(f"""s_add_u32 m0, s{T1}, {k*1024}
        s_nop 0
        buffer_load_dwordx4 v{P0}, s[{SRD_DIS}:{SRD_DIS+3}], s{T0} offen lds""")
        if k < 4: p(f"s_add_u32 s{T0}, s{T0}, 1024")
    p(f"""v_lshrrev_b32 v{AT}, 4, v{LANE}
    s_lshl_b32 s{T0}, s{W}, 8
    s_add_u32 s{T0}, s{T0}, {SIMG}
    v_lshl_add_u32 v{SRD_}, v{AT}, 10, v{CG16}
    v_add_u32 v{SRD_}, s{T0}, v{SRD_}
    v_or_b32 v{LRD}, 240, v{SRD_}""")
    p(f"s_call_b64 s[{LINK}:{LINK+1}], L_init")
    p(f"""v_mov_b32 v{P1+1}, 0
    v_mov_b32 v{P1+3}, 0
    v_mov_b32 v{P0+1}, 0
    v_mov_b32 v{P0+3}, 0
    v_mov_b32 v{S1+1}, 0
    s_waitcnt vmcnt(0)
    v_readfirstlane_b32 s{T0}, v15""")
    signal(S_I)
    p(f"""s_bitcmp1_b32 s{T0}, 16
    s_cbranch_scc0 L_A_tagok
    s_add_u32 s{T0}, s{T0}, {TAGINC}
    s_lshl_b32 s{TAGP}, s{T0}, 20""")
    p.label("L_A_tagok")
    p(f"""s_lshl_b32 s{T0}, s{W}, 11
    s_lshl_b32 s{T1}, s2, 13
    s_add_u32 s{T0}, s{T0}, s{T1}
    v_lshlrev_b32 v15, 4, v{LANE}
    v_add_u32 v15, s{T0}, v15""")
    stamp(3)
    semwait(S_QK, 4, AT)
    stamp(4)
    p(f"""buffer_load_dwordx4 {v(EN,4)}, v15, s[{SRD_WS}:{SRD_WS+3}], 0 offen sc1
    buffer_load_dwordx4 {v(EN+4,4)}, v15, s[{SRD_WS}:{SRD_WS+3}], 0 offen offset:1024 sc1""")
    QK0 = H[3]
    for e in range(3):
        for h in range(2):
            p(f"ds_read_b128 {v(QK0+8*e+4*h,4)}, v{QKA+e} offset:{h*256}")
    def raw(i, h, d): return (H[h] + 4*i + d) if i < 8 else (H[2] + 8*(i-8) + 4*h + d)
    for e, slots in ((0, range(0, 4)), (1, range(4, 8)), (2, range(8, 10))):
        p(f"s_waitcnt lgkmcnt({4-2*e})")
        for h in range(2):
            for d in range(4):
                for i in slots:
                    q = QK0 + 8*e + 4*h + d
                    if h == 0 and d == 0: p(f"v_dot2_f32_bf16 v{DV+i}, v{raw(i,h,d)}, v{q}, 0")
                    else: p(f"v_dot2c_f32_bf16 v{DV+i}, v{raw(i,h,d)}, v{q}")
    for rot in (8, 4, 2, 1):
        for i in range(10):
            p(f"v_add_f32_dpp v{DV+i}, v{DV+i}, v{DV+i} row_ror:{rot} row_mask:0xf bank_mask:0xf")
    p(f"s_mov_b32 s{T0}, 0x3db8aa3b")
    for i in range(10): p(f"v_mul_f32 v{DV+i}, s{T0}, v{DV+i}")
    for i in range(10): p(f"v_exp_f32 v{DV+i}, v{DV+i}")
    p(f"""s_mov_b32 s{T0}, 0x3089705f
    v_add_f32 v{AT}, v{DV+8}, v{DV+9}
    v_add_f32 v{S0}, v{DV}, v{DV+1}
    v_add_f32 v{S0+1}, v{DV+2}, v{DV+3}
    v_mov_b32 v{AT+1}, v{AT}
    v_add_f32 v{S0+2}, v{DV+4}, v{DV+5}
    v_add_f32 v{S0+3}, v{DV+6}, v{DV+7}
    v_permlane16_swap_b32 v{AT}, v{AT+1}
    v_add_f32 v{S0}, v{S0}, v{S0+1}""")
    p(f"""v_add_f32 v{S0+2}, v{S0+2}, v{S0+3}
    v_add_f32 v{AT}, v{AT}, v{AT+1}
    v_add_f32 v{S0}, s{T0}, v{S0}
    v_add_f32 v{S0+2}, s{T0}, v{S0+2}
    v_add_f32 v{AT}, s{T0}, v{AT}
    v_rcp_f32 v{S0}, v{S0}
    v_rcp_f32 v{S0+2}, v{S0+2}
    v_rcp_f32 v{AT}, v{AT}""")
    for i in range(10):
        r = S0 if i < 4 else (S0+2 if i < 8 else AT)
        p(f"v_mul_f32 v{DV+i}, v{r}, v{DV+i}")
    for k in range(4):
        p(f"v_cvt_pk_bf16_f32 v{S0+k}, v{DV+2*k}, v{DV+2*k+1}")
    p(f"v_cvt_pk_bf16_f32 v{S1}, v{DV+8}, v{DV+9}")
    for k in range(4): p(f"v_and_b32 v{S0+k}, v{M0 if k < 2 else M1}, v{S0+k}")
    p(f"v_and_b32 v{S1}, v{M2}, v{S1}")
    stamp(5)
    pp = [P0, P0+2, P1, P1+2]
    def perm1(n):
        h, t = n >> 3, n & 7
        p(f"v_perm_b32 v{pp[n % 4]}, v{raw(9,h,t>>1)}, v{raw(8,h,t>>1)}, s{SEL1 if t&1 else SEL0}")
    perm1(0); perm1(1)
    for n in range(16):
        if n + 2 < 16: perm1(n+2)
        a = ACC + 4*n
        p(f"v_mfma_f32_16x16x16_bf16 {v(a,4)}, {v(pp[n % 4],2)}, {v(S1,2)}, 0")
    p(f"""s_mov_b32 s{RHO}, 0
    s_call_b64 s[{LINK}:{LINK+1}], L_agg
    s_call_b64 s[{LINK}:{LINK+1}], L_wout""")
    signal(S_AA)
    stamp(6)
    p(f"v_add_u32 v{FW}, {(XB - YB) & 0xffffffff}, v{FW}")
    p.label("L_poll")
    p("s_waitcnt vmcnt(0)")
    for k in range(8): p(f"v_xor_b32 v{EN+k}, s{TAGP}, v{EN+k}")
    p(f"""v_max3_u32 v{AT}, v{EN}, v{EN+1}, v{EN+2}
    v_max3_u32 v{AT+1}, v{EN+3}, v{EN+4}, v{EN+5}
    v_max3_u32 v{AT}, v{AT}, v{EN+6}, v{EN+7}
    v_max_u32 v{AT}, v{AT}, v{AT+1}
    v_cmp_lt_u32 vcc, 0xfffff, v{AT}
    s_cmp_eq_u64 vcc, 0
    s_cbranch_scc1 L_got
    s_add_u32 s93, s93, 16
    s_cmp_ge_u32 s93, {SPIN_MAX}
    s_cbranch_scc1 L_end
    s_sleep 1
    buffer_load_dwordx4 {v(EN,4)}, v15, s[{SRD_WS}:{SRD_WS+3}], 0 offen sc1
    buffer_load_dwordx4 {v(EN+4,4)}, v15, s[{SRD_WS}:{SRD_WS+3}], 0 offen offset:1024 sc1
    s_branch L_poll""")
    p.label("L_got")
    stamp(7)
    semwait(S_I, 4, AT+1)
    p(f"""ds_read_u16 v{DISD}, v{DISD}
    v_mov_b32 v{DV+9}, 0
    v_cmp_lt_u32 vcc, {EMPTY + opt.slot_cap}, v{AT}""")
    if opt.force_slow: p("s_mov_b64 vcc, -1")
    p(f"""s_cmp_lg_u64 vcc, 0
    s_cselect_b32 s{T2}, 0x10000, 0""")
    p.label("L_fill")
    FS, F0, FL, FP, FWt = H[2], H[2]+8, H[2]+16, H[2]+24, H[3]
    p(f"s_mov_b32 s{T0}, {EMPTY}")
    for k in range(8):
        p(f"""v_and_b32 v{FS+k}, 0x3fff, v{EN+k}
        v_cmp_gt_u32 s[{MK+2*k}:{MK+2*k+1}], s{T0}, v{EN+k}
        v_lshl_add_u32 v{FWt+k}, v{FS+k}, 1, s{CDIS}
        v_lshrrev_b32 v{FP+k}, 18, v{EN+k}
        v_lshl_add_u32 v{FP+k}, v{FP+k}, 2, s{CCNT}
        v_lshrrev_b32 v{F0+k}, 10, v{EN+k}
        s_mov_b64 exec, s[{MK+2*k}:{MK+2*k+1}]
        ds_read_u16 v{FWt+k}, v{FWt+k}
        ds_add_rtn_u32 v{FP+k}, v{FP+k}, v{ONE}
        s_mov_b64 exec, -1
        v_and_b32 v{F0+k}, 0x3f0, v{F0+k}
        v_or_b32 v{FL+k}, 240, v{F0+k}""")
    for k in range(8):
        p(f"""s_mov_b64 exec, s[{MK+2*k}:{MK+2*k+1}]
        s_waitcnt lgkmcnt(14)
        v_max_u32 v{DV+9}, v{DV+9}, v{FP+k}
        v_min_u32 v{FP+k}, 255, v{FP+k}
        v_lshlrev_b32 v{AT}, 1, v{FP+k}
        v_lshrrev_b32 v{FP+k}, 3, v{FP+k}
        v_and_or_b32 v{AT}, v{AT}, 14, s{CSIMG}
        v_lshl_add_u32 v{AT}, v{FP+k}, 10, v{AT}
        v_add_u32 v{F0+k}, v{F0+k}, v{AT}
        v_add_u32 v{FL+k}, v{FL+k}, v{AT}
        ds_write_b16 v{F0+k}, v{FWt+k}
        ds_write_b16 v{FL+k}, v{FS+k}""")
    p(f"""s_mov_b64 exec, -1
    v_cmp_lt_u32 vcc, 255, v{DV+9}
    s_or_b32 s{T1}, s{T2}, 0x10000
    s_cmp_lg_u64 vcc, 0
    s_cselect_b32 s{T2}, s{T1}, s{T2}
    s_add_u32 s{T2}, s{T2}, 1
    v_mov_b32 v{AT}, s{T2}
    s_add_u32 s{TL}, s{TL}, 4""")
    signal(S_L, AT)
    semwait(S_L, f"s{TL}", AT, mask=0xffff, keep=T1)
    p(f"""s_lshr_b32 s{T1}, s{T1}, 16
    s_cmp_eq_u32 s{MODE}, 0
    s_cselect_b32 s{T1}, s{T1}, 0
    s_cmp_lg_u32 s{T1}, 0
    s_cbranch_scc1 L_slow_enter
    s_lshl_b32 s{T0}, s{W}, 2
    v_mov_b32 v{AT}, s{T0}
    v_add_u32 v{AT}, s{CCNT}, v{AT}
    ds_read_b32 v{AT}, v{AT}
    ds_read_b128 {v(IDX,4)}, v{LRD}
    ds_read_b128 {v(P0,4)}, v{LRD} offset:4096
    ds_read_b128 {v(S0,4)}, v{SRD_}
    ds_read_b128 {v(S1,4)}, v{SRD_} offset:4096
    s_waitcnt lgkmcnt(4)
    v_readfirstlane_b32 s{RHO}, v{AT}
    s_add_u32 s{RHO}, s{RHO}, 31
    s_lshr_b32 s{RHO}, s{RHO}, 5
    s_cmp_eq_u32 s{RHO}, 0
    s_cbranch_scc1 L_round_done
    s_sub_u32 s{RHO}, s{RHO}, 1
    s_waitcnt lgkmcnt(3)""")
    def addrs(src):
        for i in range(8):
            sel = " op_sel:[1,0,0,0]" if i & 1 else ""
            p(f"v_mad_u32_u16 v{AD+i}, v{src + (i>>1)}, s{C512}, v{CG16}{sel}")
    def loads(u, h):
        for i in range(8):
            p(f"buffer_load_dwordx4 {v(H[u]+4*i,4)}, v{AD+i}, s[{SRD_X}:{SRD_X+3}], 0 offen" + (" offset:256" if h else ""))
    addrs(IDX); loads(0, 0); loads(1, 1)
    p(f"""s_cmp_eq_u32 s{RHO}, 0
    s_cbranch_scc1 L_pro_done
    s_waitcnt lgkmcnt(2)""")
    addrs(P0); loads(2, 0); loads(3, 1)
    p.label("L_pro_done")
    p(f"""ds_read_b128 {v(IDX,4)}, v{LRD} offset:8192
    v_add_u32 v{LRD}, {3*4096}, v{LRD}
    v_add_u32 v{SRD_}, {2*4096}, v{SRD_}
    s_cmp_lg_u32 s{MODE}, 0
    s_cbranch_scc1 L_nozero""")
    for i in range(64): p(f"v_mov_b32 v{ACC+i}, 0")
    p.label("L_nozero")
    stamp(8)
    p(f"s_call_b64 s[{LINK}:{LINK+1}], L_agg")
    p("s_branch L_round_end")
    p.label("L_round_done")
    p(f"""s_waitcnt lgkmcnt(0)
    s_cmp_lg_u32 s{MODE}, 0
    s_cbranch_scc1 L_round_end""")
    for i in range(64): p(f"v_mov_b32 v{ACC+i}, 0")
    p.label("L_round_end")
    p(f"""s_cmp_lg_u32 s{MODE}, 0
    s_cbranch_scc1 L_slow_next""")
    p.label("L_A_tail")
    stamp(9)
    p(f"""s_waitcnt lgkmcnt(0)
    v_lshlrev_b32 v{DISD}, 16, v{DISD}
    s_nop 4""")
    for i in range(32):
        p(f"v_pk_mul_f32 {v(ACC+2*i,2)}, {v(ACC+2*i,2)}, {v(DISD,2)} op_sel_hi:[1,0]")
    p(f"s_call_b64 s[{LINK}:{LINK+1}], L_wout")
    signal(S_AL)
    stamp(10)
    p("s_branch L_final")

    p.label("L_slow_enter")
    for i in range(64): p(f"v_mov_b32 v{ACC+i}, 0")
    srd(SRD_SRC, 6, 640000)
    srd(SRD_DST, 8, 640000)
    p(f"s_mov_b32 s{MODE}, 0")
    p.label("L_slow_next")
    p(f"""s_cmp_eq_u32 s{MODE}, 625
    s_cbranch_scc1 L_A_tail
    s_lshl_b32 s{T0}, s{MODE}, 10
    s_add_u32 s{MODE}, s{MODE}, 1
    v_lshl_add_u32 v{AT}, s{W}, 6, v{LANE}
    v_lshlrev_b32 v{AT}, 2, v{AT}
    buffer_load_dword v{EN}, v{AT}, s[{SRD_SRC}:{SRD_SRC+3}], s{T0} offen
    buffer_load_dword v{EN+1}, v{AT}, s[{SRD_DST}:{SRD_DST+3}], s{T0} offen
    v_lshrrev_b32 v{AT}, 4, v{LANE}
    s_lshl_b32 s{T0}, s{W}, 8
    s_add_u32 s{T0}, s{T0}, {SIMG}
    v_lshl_add_u32 v{SRD_}, v{AT}, 10, v{CG16}
    v_add_u32 v{SRD_}, s{T0}, v{SRD_}
    v_or_b32 v{LRD}, 240, v{SRD_}
    s_waitcnt lgkmcnt(0)
    s_call_b64 s[{LINK}:{LINK+1}], L_init
    s_add_u32 s{TR}, s{TR}, 4""")
    signal(S_R)
    semwait(S_R, f"s{TR}", AT)
    p(f"""s_mul_i32 s{T0}, s2, 40
    s_waitcnt vmcnt(0)
    v_subrev_u32 v{EN+1}, s{T0}, v{EN+1}
    v_cmp_gt_u32 vcc, 40, v{EN+1}
    v_mul_u32_u24 v{AT}, 26, v{EN+1}
    v_lshrrev_b32 v{AT}, 8, v{AT}
    v_mad_u32_u24 v{AT}, v{AT}, 6, v{EN+1}
    v_lshl_or_b32 v{AT}, v{AT}, 14, v{EN}
    v_mov_b32 v{EN+1}, {EMPTY}
    v_cndmask_b32_e64 v{EN}, v{EN+1}, v{AT}, vcc""")
    for k in range(2, 8): p(f"v_mov_b32 v{EN+k}, {EMPTY}")
    p(f"""v_mov_b32 v{DV+9}, 0
    s_mov_b32 s{T2}, 0
    s_branch L_fill""")

    p.label("L_init")
    p(f"""v_and_b32 v{AT}, 15, v{LANE}
    v_cmp_eq_u32 vcc, 15, v{AT}
    s_lshl_b32 s{T0}, s{W}, 2
    s_add_u32 s{T0}, s{T0}, s{CCNT}
    v_mov_b32 v{AT+1}, s{T0}
    v_cndmask_b32_e64 v{S0}, 0, -1, vcc
    v_cndmask_b32_e64 v{S0+1}, 0, -1, vcc
    v_cndmask_b32_e64 v{S0+2}, 0, -1, vcc
    v_cndmask_b32_e64 v{S0+3}, 0, -1, vcc
    ds_write_b32 v{AT+1}, v{ZERO}""")
    for k in range(8): p(f"ds_write_b128 v{SRD_}, {v(S0,4)} offset:{k*4096}")
    p(f"s_setpc_b64 s[{LINK}:{LINK+1}]")

    p.label("L_wout")
    p("""s_nop 7
    s_mov_b32 exec_lo, 0x03ff03ff
    s_mov_b32 exec_hi, 0x03ff03ff""")
    for h in range(2):
        for r in range(4):
            d = P0 if r % 2 == 0 else P1
            for k in range(4):
                p(f"v_cvt_pk_bf16_f32 v{d+k}, v{ACC+(8*h+2*k)*4+r}, v{ACC+(8*h+2*k+1)*4+r}")
            p(f"ds_write_b128 v{FW}, {v(d,4)} offset:{(4*h+r)*2560}")
    p(f"""s_mov_b64 exec, -1
    s_setpc_b64 s[{LINK}:{LINK+1}]""")

    def perms(u, t, P):
        for q in range(4):
            p(f"v_perm_b32 v{P+q}, v{H[u]+4*(2*q+1)+(t>>1)}, v{H[u]+4*(2*q)+(t>>1)}, s{SEL1 if t&1 else SEL0}")
    def CB(u, S):
        h = u & 1
        perms(u, 0, P0)
        for t in range(8):
            if t < 7: perms(u, t+1, P1 if t % 2 == 0 else P0)
            a = ACC + (8*h + t)*4
            p(f"v_mfma_f32_16x16x32_bf16 {v(a,4)}, {v(P0 if t % 2 == 0 else P1,4)}, {v(S,4)}, {v(a,4)}")
    p.label("L_agg")
    for pi in range(2):
        S = S0 if pi == 0 else S1
        L1, L2, L3, L4, L5 = newl("a"), newl("a"), newl("a"), newl("a"), newl("a")
        p(f"""s_cmp_eq_u32 s{RHO}, 0
        s_waitcnt vmcnt(24) lgkmcnt(1)
        s_cbranch_scc0 {L1}
        s_waitcnt vmcnt(8)""")
        p.label(L1)
        CB(2*pi, S)
        p(f"""s_cmp_lt_u32 s{RHO}, 2
        s_cbranch_scc1 {L2}
        s_waitcnt lgkmcnt(0)""")
        addrs(IDX); loads(2*pi, 0)
        p(f"""ds_read_b128 {v(IDX,4)}, v{LRD}
        v_add_u32 v{LRD}, 4096, v{LRD}
        s_waitcnt vmcnt(24)
        s_branch {L3}""")
        p.label(L2)
        p(f"""s_cmp_eq_u32 s{RHO}, 0
        s_waitcnt vmcnt(16)
        s_cbranch_scc0 {L3}
        s_waitcnt vmcnt(0)""")
        p.label(L3)
        CB(2*pi+1, S)
        p(f"""s_cmp_lt_u32 s{RHO}, 2
        s_cbranch_scc1 {L4}""")
        loads(2*pi+1, 1)
        p(f"""ds_read_b128 {v(S,4)}, v{SRD_}
        v_add_u32 v{SRD_}, 4096, v{SRD_}""")
        p.label(L4)
        p(f"""s_cmp_eq_u32 s{RHO}, 0
        s_cbranch_scc1 L_agg_ret
        s_sub_u32 s{RHO}, s{RHO}, 1""")
        if pi == 1: p("s_branch L_agg")
    p.label("L_agg_ret")
    p(f"s_setpc_b64 s[{LINK}:{LINK+1}]")

    p.label("L_final")
    p(f"""v_lshrrev_b32 v4, 5, v{LANE}
    s_lshl_b32 s{T0}, s{WV}, 1
    v_add_u32 v4, s{T0}, v4
    v_and_b32 v5, 31, v{LANE}
    v_lshrrev_b32 v6, 3, v5
    v_xor_b32 v7, v4, v5
    v_and_b32 v7, 7, v7
    v_lshlrev_b32 v7, 4, v7
    v_lshl_add_u32 v7, v4, 7, v7
    v_lshl_add_u32 v7, v6, 14, v7
    v_lshrrev_b32 v6, 1, v6
    v_lshl_add_u32 v7, v6, 7, v7
    v_lshlrev_b32 v5, 4, v5
    v_lshl_add_u32 v5, v4, 9, v5
    s_mul_i32 s{T0}, s2, 20480
    s_add_u32 s{T1}, s{T0}, 8192
    s_add_u32 s{T2}, s{T0}, 16384
    s_waitcnt lgkmcnt(0)
    s_barrier
    ds_read_b128 v[8:11], v7 offset:{RING}
    ds_read_b128 v[12:15], v7 offset:{RING+2048}
    s_cmp_ge_u32 s{WV}, 4
    s_cbranch_scc1 L_fin2
    ds_read_b128 v[16:19], v7 offset:{RING+4096}
    s_waitcnt lgkmcnt(0)
    buffer_store_dwordx4 v[16:19], v5, s[{SRD_OUT}:{SRD_OUT+3}], s{T2} offen""")
    p.label("L_fin2")
    p(f"""s_waitcnt lgkmcnt(0)
    buffer_store_dwordx4 v[8:11], v5, s[{SRD_OUT}:{SRD_OUT+3}], s{T0} offen
    buffer_store_dwordx4 v[12:15], v5, s[{SRD_OUT}:{SRD_OUT+3}], s{T1} offen""")
    stamp(11)
    stamp_out()
    stretch()
    p("s_endpgm")

    p.label("L_upd")
    p(f"""s_cmp_lg_u32 s{WV}, 0
    s_cbranch_scc1 L_end
    s_waitcnt lgkmcnt(0)
    global_load_dword v15, v{ZERO}, s[28:29] sc1
    s_add_u32 s60, s28, {SLOT0 + NWG*8192}
    s_addc_u32 s61, s29, 0
    s_mov_b32 s62, 8192
    s_mov_b32 s63, 0x20000
    v_lshlrev_b32 v4, 4, v{LANE}
    s_movk_i32 s{T1}, 4096
    s_waitcnt vmcnt(0)
    v_readfirstlane_b32 s64, v15
    s_lshr_b32 s64, s64, 20
    s_add_u32 s65, s64, {TAGINC}
    s_lshl_b32 s65, s65, 20""")
    p.label("L_upd_poll")
    for k in range(8):
        p(f"buffer_load_dwordx4 {v(16+4*k,4)}, v4, s[60:63], {'0' if k < 4 else 's%d' % T1} offen offset:{(k&3)*1024} sc1")
    p("s_waitcnt vmcnt(0)")
    for k in range(32): p(f"v_xor_b32 v{16+k}, s65, v{16+k}")
    for k in range(1, 31, 2): p(f"v_max3_u32 v16, v16, v{16+k}, v{17+k}")
    p(f"""v_max_u32 v16, v16, v47
    v_cmp_lt_u32 vcc, 0xfffff, v16
    s_cmp_eq_u64 vcc, 0
    s_cbranch_scc1 L_upd_go
    s_add_u32 s93, s93, 16
    s_cmp_ge_u32 s93, {SPIN_MAX}
    s_cbranch_scc1 L_end
    s_sleep 8
    s_branch L_upd_poll""")
    p.label("L_upd_go")
    p(f"""s_or_b32 s64, s64, 0x10000
    v_mov_b32 v5, s64
    v_mov_b32 v6, s65
    s_mov_b64 exec, 1
    global_store_dword v{ZERO}, v5, s[26:27] sc0 sc1
    s_waitcnt vmcnt(0)
    global_store_dword v{ZERO}, v6, s[28:29] sc0 sc1""")
    p.label("L_end")
    p("s_endpgm")

    a, b = p.finish()
    hdr = open(os.path.join(os.path.dirname(os.path.abspath(__file__)), "header.txt")).read()
    out = hdr + f"; @launch grid=({NWG+1},1,1) block=(512,1,1) lds={LDS_TOTAL}\n"
    out += f""".amdgcn_target "amdgcn-amd-amdhsa--gfx950"
.text
.globl {KNAME}
.p2align 8
.type {KNAME},@function
{KNAME}:
"""
    out += p.text()
    out += f""".section .rodata,"a"
.p2align 6
.amdhsa_kernel {KNAME}
  .amdhsa_next_free_vgpr 256
  .amdhsa_next_free_sgpr 102
  .amdhsa_accum_offset 256
  .amdhsa_group_segment_fixed_size 0
  .amdhsa_kernarg_size 104
  .amdhsa_user_sgpr_count 2
  .amdhsa_user_sgpr_kernarg_segment_ptr 1
  .amdhsa_system_sgpr_workgroup_id_x 1
  .amdhsa_float_denorm_mode_32 3
.end_amdhsa_kernel
"""
    sys.stderr.write(f"auto nops: linear {a}, edges {b}; {sum(1 for i in p.ins if i.states)} instructions\n")
    return out

if __name__ == "__main__":
    import argparse
    ap = argparse.ArgumentParser()
    ap.add_argument("-o", default="gather_scatter__hybrid_graph_tf_exphormer__graph.s")
    ap.add_argument("--stamps", action="store_true")
    ap.add_argument("--dbgstamps", action="store_true")
    ap.add_argument("--stretch", default="")
    ap.add_argument("--force-slow", action="store_true")
    ap.add_argument("--slot-cap", type=int, default=31)
    a = ap.parse_args()
    Opt.stamps = a.stamps or a.dbgstamps; Opt.dbgstamps = a.dbgstamps; Opt.force_slow = a.force_slow
    if a.stretch: Opt.stretch = [int(x) for x in a.stretch.split(',')]; Opt.stamps = True
    Opt.slot_cap = a.slot_cap
    open(a.o, "w").write(build())
```

```python
import sys, os
sys.path.insert(0, os.path.dirname(os.path.abspath(__file__)))
from asmlib import Prog

KNAME = "gather_scatter__hybrid_graph_tf_exphormer__graph_kernel"

SEM = 0
RING = 256
XB = RING + 65536
YB = XB + 20480
ZB = YB + 20480
IMG = ZB
DIS = ZB
SIMG = ZB + 20480
LDS_TOTAL = SIMG + 32768
S_X, S_Q, S_QK, S_AA, S_AL, S_CPY, S_I, S_L, CNT, S_R = 0, 4, 8, 12, 16, 20, 24, 28, 32, 48
assert IMG + 32768 <= LDS_TOTAL and LDS_TOTAL <= 163840

NWG = 250
NPROD = 64
SLOT0 = 65536
STAMP0 = 8 << 20
EMPTY = 0xFC000
TAGINC = 0x2C5
SPIN_MAX = 1 << 21

def v(n, c=1): return f"v{n}" if c == 1 else f"v[{n}:{n+c-1}]"
def s(n, c=1): return f"s{n}" if c == 1 else f"s[{n}:{n+c-1}]"

class Opt:
    stamps = False
    dbgstamps = False
    stretch = None
    force_slow = False
    slot_cap = 31

def build(opt=Opt):
    p = Prog()
    lbl = [0]
    def newl(n):
        lbl[0] += 1
        return f"L_{n}_{lbl[0]}"

    TID, LANE, ZERO, ONE = 0, 1, 2, 3
    SEMA = ZERO
    WV, LINK, W = 3, 30, 32
    T0, T1, T2 = 33, 34, 35
    SRD_X, SRD_OUT, SRD_SRC, SRD_DST = 36, 40, 44, 48
    STAMP = 90

    nstamp = [0]
    def stamp(slot):
        if not opt.stamps: return
        p(f"""s_memrealtime s[90:91]
        s_waitcnt lgkmcnt(0)
        v_writelane_b32 v0, s90, {slot}""")
    def stamp_out():
        if not opt.stamps: return
        p(f"""s_lshl_b32 s92, s2, 3
        s_add_u32 s92, s92, s{WV}
        s_lshl_b32 s92, s92, 7
        s_add_u32 s92, s92, {STAMP0}
        v_lshlrev_b32 v20, 2, v{LANE}
        v_add_u32 v20, s92, v20
        s_mov_b32 exec_hi, 0
        global_store_dword v20, v0, s[28:29]
        s_mov_b64 exec, -1""")
        if opt.dbgstamps:
            L = newl("dbg")
            p(f"""s_and_b32 s90, s{WV}, 3
            s_cmp_lg_u32 s90, 0
            s_cbranch_scc1 {L}
            s_and_b32 s90, s2, 127
            s_cmp_lg_u32 s90, 100
            s_cbranch_scc1 {L}
            v_readlane_b32 s90, v0, 0
            s_nop 3
            v_subrev_u32 v21, s90, v0
            v_lshrrev_b32 v21, 4, v21
            v_min_u32 v21, 255, v21
            s_lshr_b32 s90, s{WV}, 2
            s_mul_i32 s90, s90, 12
            s_add_u32 s90, s90, 4
            s_lshr_b32 s91, s2, 7
            s_mul_i32 s91, s91, 24
            s_add_u32 s90, s90, s91
            v_add_u32 v22, s90, v{LANE}
            s_mov_b64 exec, 0xfff
            global_store_byte v22, v21, s[26:27]
            s_mov_b64 exec, -1""")
            p.label(L)

    def stretch():
        if not opt.stretch: return
        wv, sa, sb, mult = opt.stretch
        L = newl("st"); L2 = newl("st")
        if sa < 0:
            p(f"""s_cmp_lg_u32 s{WV}, {wv}
            s_cbranch_scc1 {L}
            global_load_dword v21, v{ZERO}, s[28:29] offset:64 sc1
            s_waitcnt vmcnt(0)
            v_readfirstlane_b32 s90, v21
            v_readlane_b32 s91, v0, {sb}
            v_readlane_b32 s94, v0, 11
            s_sub_u32 s90, s91, s90
            s_max_i32 s90, s90, 0
            s_mul_i32 s90, s90, {mult}
            s_min_u32 s90, s90, 200000""")
            p.label(L2)
            p(f"""s_memrealtime s[96:97]
            s_waitcnt lgkmcnt(0)
            s_sub_u32 s96, s96, s94
            s_cmp_lt_u32 s96, s90
            s_cbranch_scc1 {L2}""")
            p.label(L)
            return
        p(f"""s_cmp_lg_u32 s2, 100
        s_cbranch_scc1 {L}
        s_cmp_lg_u32 s{WV}, {wv}
        s_cbranch_scc1 {L}
        v_readlane_b32 s90, v0, {sa}
        v_readlane_b32 s91, v0, {sb}
        v_readlane_b32 s94, v0, 11
        s_sub_u32 s90, s91, s90
        s_mul_i32 s90, s90, {mult}
        s_min_u32 s90, s90, 200000""")
        p.label(L2)
        p(f"""s_memrealtime s[96:97]
        s_waitcnt lgkmcnt(0)
        s_sub_u32 s96, s96, s94
        s_cmp_lt_u32 s96, s90
        s_cbranch_scc1 {L2}""")
        p.label(L)

    def srd(base, ptr, size):
        p(f"""s_mov_b32 s{base}, s{ptr}
        s_mov_b32 s{base+1}, s{ptr+1}
        s_mov_b32 s{base+2}, {size}
        s_mov_b32 s{base+3}, 0x20000""")

    def signal(off, val=ONE):
        p(f"""s_mov_b64 exec, 1
        ds_add_u32 v{SEMA}, v{val} offset:{off}
        s_mov_b64 exec, -1""")

    def semwait(off, target, tmpv, mask=None, keep=None):
        L = newl("sw")
        p.label(L)
        p(f"""ds_read_b32 v{tmpv}, v{SEMA} offset:{off}
        s_waitcnt lgkmcnt(0)
        v_readfirstlane_b32 s{T0}, v{tmpv}""")
        if keep is not None: p(f"s_mov_b32 s{keep}, s{T0}")
        if mask is not None: p(f"s_and_b32 s{T0}, s{T0}, {mask}")
        L2 = newl("sd")
        p(f"""s_cmp_ge_u32 s{T0}, {target}
        s_cbranch_scc1 {L2}
        s_add_u32 s93, s93, 1
        s_cmp_lt_u32 s93, {SPIN_MAX}
        s_cbranch_scc1 {L}
        s_endpgm""")
        p.label(L2)

    p(f"""s_cmp_gt_u32 s2, {NWG}
    s_cbranch_scc1 L_end
    s_load_dwordx16 s[4:19], s[0:1], 0
    s_load_dwordx8 s[20:27], s[0:1], 64
    s_load_dwordx2 s[28:29], s[0:1], 96
    v_lshrrev_b32 v4, 6, v0
    v_and_b32 v{LANE}, 63, v0
    v_readfirstlane_b32 s{WV}, v4
    v_mov_b32 v{ZERO}, 0
    v_mov_b32 v{ONE}, 1
    s_mov_b32 s93, 0
    v_lshlrev_b32 v4, 2, v{LANE}
    s_cmp_eq_u32 s2, {NWG}
    s_cbranch_scc1 L_upd
    ds_write_b32 v4, v{ZERO}
    s_and_b32 s{W}, s{WV}, 3
    s_cmp_ge_u32 s2, {NPROD}
    s_cbranch_scc1 L_noimg
    v_mov_b32 v8, {EMPTY}
    v_mov_b32 v9, {EMPTY}
    v_mov_b32 v10, {EMPTY}
    v_mov_b32 v11, {EMPTY}
    v_lshlrev_b32 v4, 4, v0
    v_add_u32 v4, {IMG}, v4
    ds_write_b128 v4, v[8:11]
    ds_write_b128 v4, v[8:11] offset:8192
    ds_write_b128 v4, v[8:11] offset:16384
    ds_write_b128 v4, v[8:11] offset:24576
    v_lshlrev_b32 v4, 2, v0
    s_mul_i32 s{T0}, s2, 10000
    s_movk_i32 s{T1}, 4096
    s_movk_i32 s{T2}, 8192
    s_waitcnt lgkmcnt(0)""")
    BD, BS, BB, BH, BR, BT = 200, 205, 210, 215, 220, 225
    p(f"""s_add_u32 s{SRD_DST}, s8, s{T0}
    s_addc_u32 s{SRD_DST+1}, s9, 0
    s_mov_b32 s{SRD_DST+2}, 10000
    s_mov_b32 s{SRD_DST+3}, 0x20000
    s_add_u32 s{SRD_SRC}, s6, s{T0}
    s_addc_u32 s{SRD_SRC+1}, s7, 0
    s_mov_b32 s{SRD_SRC+2}, 10000
    s_mov_b32 s{SRD_SRC+3}, 0x20000""")
    for i, (so, im) in enumerate([("0", 0), ("0", 2048), (f"s{T1}", 0), (f"s{T1}", 2048), (f"s{T2}", 0)]):
        p(f"buffer_load_dword v{BD+i}, v4, s[{SRD_DST}:{SRD_DST+3}], {so} offen offset:{im}")
    for i, (so, im) in enumerate([("0", 0), ("0", 2048), (f"s{T1}", 0), (f"s{T1}", 2048), (f"s{T2}", 0)]):
        p(f"buffer_load_dword v{BS+i}, v4, s[{SRD_SRC}:{SRD_SRC+3}], {so} offen offset:{im}")
    p.label("L_noimg")
    p("s_waitcnt lgkmcnt(0)")
    if opt.stamps: p('v_mov_b32 v0, 0')
    stamp(0)
    if opt.stretch and opt.stretch[1] < 0:
        L = newl("w0")
        p(f"""s_add_u32 s90, s2, s{WV}
        s_cmp_lg_u32 s90, 0
        s_cbranch_scc1 {L}
        v_readlane_b32 s90, v0, 0
        s_nop 1
        v_mov_b32 v20, s90
        global_store_dword v{ZERO}, v20, s[28:29] offset:64 sc0 sc1
        s_waitcnt vmcnt(0)""")
        p.label(L)
    srd(SRD_X, 4, 5120000)
    srd(SRD_OUT, 24, 5120000)
    p(f"""s_cmp_ge_u32 s{WV}, 4
    s_cbranch_scc1 L_A""")

    DC, DK, DT = 4, 8, 12
    VT, VK, VB, VF01, VF2 = 16, 20, 22, 26, 27
    VQ01, VQ2, VQK, VOUT = 28, 29, 30, 34
    GT = 38
    PA, PB, QA, QB = 48, 64, 76, 92
    ACC1, ACC2 = 104, 152
    SRD_W, SRD_PF, SOFF, RB, IT = 52, 56, 60, 64, 65
    J, G4 = 240, 241

    p(f"""s_cmp_eq_u32 s{W}, 1
    s_cselect_b64 s[{SRD_PF}:{SRD_PF+1}], s[20:21], s[18:19]
    s_cmp_eq_u32 s{W}, 2
    s_cselect_b64 s[{SRD_PF}:{SRD_PF+1}], s[22:23], s[{SRD_PF}:{SRD_PF+1}]
    s_cmp_eq_u32 s{W}, 3
    s_cselect_b64 s[{SRD_PF}:{SRD_PF+1}], s[16:17], s[{SRD_PF}:{SRD_PF+1}]
    s_mov_b32 s{SRD_PF+2}, 131072
    s_mov_b32 s{SRD_PF+3}, 0x20000
    s_lshr_b32 s{T0}, s2, 3
    s_and_b32 s{T0}, s{T0}, 31
    s_lshl_b32 s{T0}, s{T0}, 12
    v_lshlrev_b32 v{GT}, 7, v{LANE}
    s_mov_b32 exec_hi, 0
    buffer_load_dword v{GT+1}, v{GT}, s[{SRD_PF}:{SRD_PF+3}], s{T0} offen
    s_mov_b32 exec_hi, -1""")
    stamp(12)
    p(f"""v_lshrrev_b32 v{GT+2}, 5, v{LANE}
    s_mul_i32 s{T0}, s{W}, 10
    v_add_u32 v{GT+2}, s{T0}, v{GT+2}
    v_and_b32 v{GT+3}, 31, v{LANE}
    s_mul_i32 s{T1}, s2, 20480
    s_mul_i32 s{T2}, s{W}, 5120
    s_add_u32 s{T2}, s{T2}, {XB}""")
    for k in range(5):
        p(f"""v_and_b32 v{GT+4}, 15, v{GT+2}
        v_xor_b32 v{GT+4}, v{GT+4}, v{GT+3}
        v_lshlrev_b32 v{GT+4}, 4, v{GT+4}
        v_lshl_add_u32 v{GT+4}, v{GT+2}, 9, v{GT+4}
        s_add_u32 m0, s{T2}, {k*1024}
        v_add_u32 v{GT+2}, 2, v{GT+2}
        buffer_load_dwordx4 v{GT+4}, s[{SRD_X}:{SRD_X+3}], s{T1} offen lds""")
    p(f"""v_lshrrev_b32 v{GT}, 3, v{LANE}
    v_and_b32 v{GT+2}, 7, v{LANE}
    v_and_b32 v{GT+3}, 2, v{GT}
    v_xor_b32 v{GT+3}, v{GT+3}, v{GT+2}
    v_lshlrev_b32 v{GT+4}, 9, v{GT}
    s_lshl_b32 s{T0}, s{W}, 7
    v_add_u32 v{GT+4}, s{T0}, v{GT+4}
    v_lshl_add_u32 v{DT}, v{GT+3}, 4, v{GT+4}
    v_xor_b32 v{GT+3}, 4, v{GT+3}
    v_lshl_add_u32 v{DT+1}, v{GT+3}, 4, v{GT+4}
    v_add_u32 v{DT+2}, {2*15360}, v{DT}
    v_add_u32 v{DT+3}, {3*15360}, v{DT+1}
    v_add_u32 v{DT+1}, {15360}, v{DT+1}
    s_lshl_b32 s{RB}, s{W}, 14
    s_add_u32 s{RB}, s{RB}, {RING}""")
    p(f"""s_mov_b32 s{SRD_W}, s18
    s_mov_b32 s{SRD_W+1}, s19
    s_mov_b32 s{SRD_W+2}, 131072
    s_mov_b32 s{SRD_W+3}, 0x20000""")

    def set_soff_T(h):
        for j in range(4): p(f"s_mov_b32 s{SOFF+j}, {j*4096 + h*65536}")
    def set_soff_K(b):
        for j in range(4): p(f"s_mov_b32 s{SOFF+j}, {(j>>1)*128 + (j&1)*16384 + b*256}")
    def issue(j, regs=DC):
        p(f"s_add_u32 m0, s{RB}, {j*4096}")
        for g in range(4):
            p(f"buffer_load_dwordx4 v{regs+g}, s[{SRD_W}:{SRD_W+3}], s{SOFF+j} offen offset:{g*1024} lds")
    set_soff_T(0)
    for j in range(4): issue(j, DT)
    stamp(13)
    p(f"""v_lshrrev_b32 v{GT+3}, 1, v{GT}
    v_xor_b32 v{GT+3}, v{GT+3}, v{GT+2}
    s_lshl_b32 s{T0}, s{W}, 15
    v_lshlrev_b32 v{GT+4}, 9, v{GT}
    v_add_u32 v{GT+4}, s{T0}, v{GT+4}
    v_lshl_add_u32 v{DK}, v{GT+3}, 4, v{GT+4}
    v_xor_b32 v{GT+3}, 4, v{GT+3}
    v_lshl_add_u32 v{DK+1}, v{GT+3}, 4, v{GT+4}
    v_add_u32 v{DK+2}, {2*3072}, v{DK}
    v_add_u32 v{DK+3}, {3*3072}, v{DK+1}
    v_add_u32 v{DK+1}, {3072}, v{DK+1}""")
    for g in range(4): p(f"v_mov_b32 v{DC+g}, v{DT+g}")
    p(f"""v_and_b32 v{J}, 15, v{LANE}
    v_lshrrev_b32 v{G4}, 4, v{LANE}""")
    p(f"""v_bfe_u32 v{GT}, v{LANE}, 2, 2
    v_and_b32 v{GT+2}, 3, v{LANE}
    v_lshlrev_b32 v{GT+3}, 10, v{G4}
    v_lshl_add_u32 v{GT+3}, v{GT}, 7, v{GT+3}
    v_lshl_add_u32 v{GT+3}, v{GT+2}, 3, v{GT+3}
    v_add_u32 v{GT+3}, s{RB}, v{GT+3}
    v_and_b32 v{GT+4}, 1, v{G4}
    v_lshlrev_b32 v{GT+4}, 1, v{GT+4}
    v_lshrrev_b32 v{GT}, 1, v{GT}
    v_or_b32 v{GT+4}, v{GT+4}, v{GT}""")
    for t in range(4):
        p(f"""v_xor_b32 v{GT}, {t}, v{GT+4}
        v_lshl_add_u32 v{VT+t}, v{GT}, 5, v{GT+3}""")
    p(f"""v_lshrrev_b32 v{GT}, 3, v{J}
    v_and_b32 v{GT+2}, 7, v{J}
    v_lshlrev_b32 v{GT}, 10, v{GT}
    v_lshl_add_u32 v{GT}, v{GT+2}, 7, v{GT}
    v_add_u32 v{GT}, s{RB}, v{GT}
    v_lshrrev_b32 v{GT+3}, 1, v{J}
    v_xor_b32 v{GT+3}, v{GT+3}, v{G4}
    v_lshl_add_u32 v{VK}, v{GT+3}, 4, v{GT}
    v_xor_b32 v{GT+3}, 4, v{GT+3}
    v_lshl_add_u32 v{VK+1}, v{GT+3}, 4, v{GT}""")
    p(f"""v_lshlrev_b32 v{GT}, 9, v{J}
    v_add_u32 v{GT}, {XB}, v{GT}
    v_lshlrev_b32 v{GT+3}, 2, v{G4}
    v_xor_b32 v{GT+3}, v{GT+3}, v{J}""")
    for r in range(4):
        p(f"""v_xor_b32 v{GT+4}, {r}, v{GT+3}
        v_lshl_add_u32 v{VB+r}, v{GT+4}, 4, v{GT}""")
    p(f"""v_lshlrev_b32 v{GT+3}, 4, v{J}
    v_lshl_add_u32 v{VF01}, v{G4}, 8, v{GT+3}
    v_add_u32 v{VF01}, {YB}, v{VF01}
    v_lshlrev_b32 v{GT+3}, 4, v{GT+2}
    v_lshl_add_u32 v{VF2}, v{G4}, 7, v{GT+3}
    v_add_u32 v{VF2}, {YB+2048}, v{VF2}""")
    p(f"""v_lshrrev_b32 v{GT+4}, 1, v{G4}
    v_and_b32 v{GT+5}, 1, v{G4}
    v_lshlrev_b32 v{GT+5}, 3, v{GT+5}
    s_mul_i32 s{T0}, s{W}, 5120
    s_add_u32 s{T0}, s{T0}, {YB}
    v_lshl_add_u32 v{GT+6}, v{J}, 4, v{GT+5}
    v_lshl_add_u32 v{GT+6}, v{GT+4}, 8, v{GT+6}
    v_add_u32 v{VQ01}, s{T0}, v{GT+6}
    v_add_u32 v{GT+6}, v{GT+3}, v{GT+5}
    v_lshl_add_u32 v{GT+6}, v{GT+4}, 7, v{GT+6}
    s_add_u32 s{T0}, s{T0}, 2048
    v_add_u32 v{VQ2}, s{T0}, v{GT+6}""")
    p(f"""s_lshl_b32 s{T0}, s{W}, 7
    v_add_u32 v{GT}, s{T0}, v{GT}
    v_add_u32 v{GT}, v{GT}, v{GT+5}
    s_lshr_b32 s{T0}, s{W}, 1
    s_lshl_b32 s{T0}, s{T0}, 7
    s_add_u32 s{T0}, s{T0}, s{RB}
    v_lshl_add_u32 v{GT+6}, v{J}, 7, v{GT+5}
    v_add_u32 v{GT+6}, s{T0}, v{GT+6}
    v_xor_b32 v{GT+4}, v{GT+4}, v{GT+2}""")
    for t in range(4):
        p(f"""v_xor_b32 v{GT+3}, {2*t}, v{GT+4}
        v_lshl_add_u32 v{VQK+t}, v{GT+3}, 4, v{GT}
        v_lshl_add_u32 v{VOUT+t}, v{GT+3}, 4, v{GT+6}""")
    for i in range(48): p(f"v_mov_b32 v{ACC1+i}, 0")
    for i in range(48): p(f"v_mov_b32 v{ACC2+i}, 0")
    stamp(14)
    p(f"""s_waitcnt lgkmcnt(0)
    s_barrier""")
    stamp(15)
    p(f"""s_cmp_ge_u32 s2, {NPROD}
    s_cbranch_scc1 L_G_nobin
    s_waitcnt vmcnt(22)""")
    stamp(16)
    p(f"""s_call_b64 s[{LINK}:{LINK+1}], L_bin""")
    stamp(17)
    p.label("L_G_nobin")
    if opt.stamps:
        p("s_waitcnt vmcnt(21)")
        stamp(18)
    p("s_waitcnt vmcnt(16)")
    signal(S_X)
    stamp(1)
    semwait(S_X, 4, GT)
    stamp(2)

    def acc(base, t, T): return base + (t*3 + T)*4
    def mfmas(base, A, B):
        for t in range(4):
            for T in range(3):
                a = acc(base, t, T)
                p(f"v_mfma_f32_16x16x32_bf16 {v(a,4)}, {v(A+4*t,4)}, {v(B+4*T,4)}, {v(a,4)}")
    def read_T(j, A):
        for t in range(4):
            p(f"ds_read_b64_tr_b16 {v(A+4*t,2)}, v{VT+t} offset:{j*4096}")
            p(f"ds_read_b64_tr_b16 {v(A+4*t+2,2)}, v{VT+t} offset:{j*4096+512}")
    def read_Bx(r, B):
        for T in range(3): p(f"ds_read_b128 {v(B+4*T,4)}, v{VB+r} offset:{T*8192}")
    def read_Bf(r, B):
        p(f"ds_read_b128 {v(B,4)}, v{VF01} offset:{r*2560}")
        p(f"ds_read_b128 {v(B+4,4)}, v{VF01} offset:{r*2560+1024}")
        p(f"ds_read_b128 {v(B+8,4)}, v{VF2} offset:{r*2560}")
    sets = [(PA, PB), (QA, QB)]
    def bodyT(readB, base, last_cond=False):
        def W(n, nlast):
            p(f"s_waitcnt vmcnt({n})")
            if last_cond and nlast != n:
                L = newl("w")
                p(f"""s_cbranch_scc0 {L}
                s_waitcnt vmcnt({nlast})""")
                p.label(L)
        def I(j):
            if last_cond:
                L = newl("i")
                p(f"s_cbranch_scc1 {L}")
                issue(j)
                p(f"s_cmp_eq_u32 s{IT}, 3")
                p.label(L)
            else:
                issue(j)
        if last_cond: p(f"s_cmp_eq_u32 s{IT}, 3")
        W(12, 12); read_T(0, PA); readB(0, PB)
        W(8, 8); read_T(1, QA); readB(1, QB)
        p("s_waitcnt lgkmcnt(11)"); I(0); mfmas(base, PA, PB)
        W(8, 4); read_T(2, PA); readB(2, PB)
        p("s_waitcnt lgkmcnt(11)"); I(1); mfmas(base, QA, QB)
        W(8, 0); read_T(3, QA); readB(3, QB)
        p("s_waitcnt lgkmcnt(11)"); I(2); mfmas(base, PA, PB)
        p("s_waitcnt lgkmcnt(0)"); I(3); mfmas(base, QA, QB)

    def read_K(pi, kk, A):
        for t in range(4):
            p(f"ds_read_b128 {v(A+4*t,4)}, v{VK+kk} offset:{(2*pi + (t>>1))*4096 + (t&1)*2048}")
    def bodyK(base):
        p("s_waitcnt vmcnt(8)")
        read_K(0, 0, PA); read_Bf(0, PB)
        read_K(0, 1, QA); read_Bf(1, QB)
        p("s_waitcnt lgkmcnt(7)"); mfmas(base, PA, PB)
        p("s_waitcnt lgkmcnt(0)"); issue(0); issue(1)
        p("s_waitcnt vmcnt(8)")
        read_K(1, 0, PA); read_Bf(2, PB)
        mfmas(base, QA, QB)
        read_K(1, 1, QA); read_Bf(3, QB)
        p("s_waitcnt lgkmcnt(7)"); mfmas(base, PA, PB)
        p("s_waitcnt lgkmcnt(0)"); issue(2); issue(3)
        mfmas(base, QA, QB)

    def cvt_write(base, addr_of, mask_T2):
        k = 0
        for T in range(3):
            if T == 2 and mask_T2: p("s_mov_b32 exec_lo, 0x00ff00ff\ns_mov_b32 exec_hi, 0x00ff00ff")
            for t in range(4):
                a = acc(base, t, T); d = GT + 2*(k % 4); k += 1
                p(f"v_cvt_pk_bf16_f32 v{d}, v{a}, v{a+1}")
                p(f"v_cvt_pk_bf16_f32 v{d+1}, v{a+2}, v{a+3}")
                r, im = addr_of(t, T)
                p(f"ds_write_b64 v{r}, {v(d,2)} offset:{im}")
            if T == 2 and mask_T2: p("s_mov_b64 exec, -1")

    set_soff_T(1)
    p(f"s_mov_b32 s{IT}, 0")
    p.label("L_g1")
    bodyT(read_Bx, ACC1)
    p(f"""s_cmp_lg_u32 s{IT}, 0
    s_cbranch_scc1 L_g1_done
    s_mov_b32 s{IT}, 1
    s_mov_b32 s{SRD_W}, s20
    s_mov_b32 s{SRD_W+1}, s21""")
    set_soff_K(0)
    for g in range(4): p(f"v_mov_b32 v{DC+g}, v{DK+g}")
    for r in range(4): p(f"v_add_u32 v{VB+r}, 256, v{VB+r}")
    p("s_branch L_g1")
    p.label("L_g1_done")
    stamp(3)
    cvt_write(ACC1, lambda t, T: (VQ01, (t>>1)*2560 + (t&1)*512 + T*1024) if T < 2 else (VQ2, (t>>1)*2560 + (t&1)*256), True)
    signal(S_Q)
    for i in range(48): p(f"v_mov_b32 v{ACC1+i}, 0")
    set_soff_K(1)
    p(f"s_mov_b32 s{IT}, 0")
    semwait(S_Q, 4, GT)
    stamp(4)
    p.label("L_g2")
    bodyK(ACC2)
    p(f"""s_cmp_lg_u32 s{IT}, 0
    s_cbranch_scc1 L_g2_done
    s_mov_b32 s{IT}, 1
    s_mov_b32 s{SRD_W}, s22
    s_mov_b32 s{SRD_W+1}, s23""")
    set_soff_T(0)
    for g in range(4): p(f"v_mov_b32 v{DC+g}, v{DT+g}")
    p(f"""v_add_u32 v{VF01}, 10240, v{VF01}
    v_add_u32 v{VF2}, 10240, v{VF2}
    s_branch L_g2""")
    p.label("L_g2_done")
    stamp(5)
    cvt_write(ACC2, lambda t, T: (VQK+t, T*8192), True)
    signal(S_QK)
    p(f"""v_subrev_u32 v{VF01}, 10240, v{VF01}
    v_subrev_u32 v{VF2}, 10240, v{VF2}""")
    set_soff_T(1)
    p(f"s_mov_b32 s{IT}, 0")
    semwait(S_AA, 4, GT)
    stamp(6)
    p.label("L_g3")
    bodyT(read_Bf, ACC1, last_cond=True)
    p(f"""s_cbranch_scc1 L_g3_done
    s_add_u32 s{IT}, s{IT}, 1
    s_cmp_eq_u32 s{IT}, 2
    s_cbranch_scc1 L_g3_mid
    v_add_u32 v{VF01}, 10240, v{VF01}
    v_add_u32 v{VF2}, 10240, v{VF2}
    s_cmp_eq_u32 s{IT}, 3
    s_cbranch_scc1 L_g3
    s_mov_b32 s{SRD_W}, s16
    s_mov_b32 s{SRD_W+1}, s17""")
    set_soff_T(0)
    p("s_branch L_g3")
    p.label("L_g3_mid")
    p(f"""v_subrev_u32 v{VF01}, {10240 + YB - XB}, v{VF01}
    v_subrev_u32 v{VF2}, {10240 + YB - XB}, v{VF2}""")
    set_soff_T(1)
    stamp(7)
    semwait(S_AL, 4, GT)
    stamp(8)
    p("s_branch L_g3")
    p.label("L_g3_done")
    stamp(9)
    cvt_write(ACC1, lambda t, T: (VOUT+t, T*2048), False)
    p("s_branch L_final")

    p.label("L_bin")
    p(f"""s_movk_i32 s{T0}, -40
    s_mov_b32 s{T1}, {IMG}
    s_mov_b32 s{T2}, {EMPTY + opt.slot_cap}
    v_lshl_add_u32 v{BT}, s{WV}, 6, v{LANE}
    v_cmp_gt_u32 vcc, 452, v{BT}
    s_mov_b64 s[96:97], vcc""")
    for i in range(5):
        p(f"""v_mul_u32_u24 v{BB+i}, 52429, v{BD+i}
        v_lshrrev_b32 v{BB+i}, 21, v{BB+i}
        v_mad_i32_i24 v{BD+i}, v{BB+i}, s{T0}, v{BD+i}
        v_mul_u32_u24 v{BT}, 26, v{BD+i}
        v_lshrrev_b32 v{BT}, 8, v{BT}
        v_mad_u32_u24 v{BD+i}, v{BT}, 6, v{BD+i}
        v_and_b32 v{BT}, 31, v{BB+i}
        v_lshl_add_u32 v{BR+i}, v{BB+i}, 7, s{T1}
        v_lshl_add_u32 v{BH+i}, v{BT}, 2, v{BR+i}""")
        if i == 4: p("s_mov_b64 exec, s[96:97]")
        p(f"ds_add_rtn_u32 v{BH+i}, v{BH+i}, v{ONE}")
        p(f"v_lshl_or_b32 v{BS+i}, v{BD+i}, 14, v{BS+i}")
    p("s_mov_b64 exec, -1")
    for i in range(5):
        p(f"""s_waitcnt lgkmcnt(4)
        v_add3_u32 v{BT}, v{BB+i}, v{BH+i}, 1
        v_and_b32 v{BT}, 31, v{BT}
        v_lshl_add_u32 v{BT}, v{BT}, 2, v{BR+i}
        v_cmp_gt_u32 vcc, s{T2}, v{BH+i}""")
        if i == 4: p("s_and_b64 exec, vcc, s[96:97]")
        else: p("s_mov_b64 exec, vcc")
        p(f"""ds_write_b32 v{BT}, v{BS+i}
        s_mov_b64 exec, -1""")
    p(f"""s_waitcnt lgkmcnt(0)
    s_barrier
    s_setpc_b64 s[{LINK}:{LINK+1}]""")

    CG16, M0, M1, M2, QKA, FW, DISD, LRD, SRD_ = 4, 5, 6, 7, 8, 11, 12, 13, 14
    AD, IDX, S0, S1, P0, P1, EN, DV = 16, 24, 28, 32, 36, 40, 44, 52
    AT = 62
    ACC = 64
    H = [128, 160, 192, 224]
    SRD_E, SRD_DIS, SRD_WS = 52, 56, 60
    TAGP, TAGC, RHO, MODE, SEL0, SEL1, TL, TR = 64, 65, 66, 67, 68, 69, 70, 71
    MK = 72
    CDIS, CCNT, CSIMG, C512 = 88, 89, 98, 99
    p.label("L_A")
    p(f"""global_load_dword v15, v{ZERO}, s[28:29] sc1
    s_mov_b32 s{SRD_E}, s10
    s_mov_b32 s{SRD_E+1}, s11
    s_mov_b32 s{SRD_E+2}, 160000
    s_mov_b32 s{SRD_E+3}, 0x20000
    s_mul_i32 s{T0}, s2, 640
    s_mul_i32 s{T1}, s{W}, 160
    s_add_u32 s{T0}, s{T0}, s{T1}
    v_lshrrev_b32 v{AT}, 4, v{LANE}
    v_lshlrev_b32 v{AD}, 5, v{AT}
    v_lshlrev_b32 v{AD+1}, 3, v{AT}
    buffer_load_dwordx4 {v(EN,4)}, v{AD}, s[{SRD_E}:{SRD_E+3}], s{T0} offen
    buffer_load_dwordx4 {v(EN+4,4)}, v{AD}, s[{SRD_E}:{SRD_E+3}], s{T0} offen offset:16
    buffer_load_dwordx2 {v(DV,2)}, v{AD+1}, s[{SRD_E}:{SRD_E+3}], s{T0} offen offset:128""")
    srd(SRD_DIS, 14, 20000)
    p(f"""s_add_u32 s{SRD_WS}, s28, {SLOT0}
    s_addc_u32 s{SRD_WS+1}, s29, 0
    s_mov_b32 s{SRD_WS+2}, {256*8192}
    s_mov_b32 s{SRD_WS+3}, 0x20000
    s_mov_b32 s{SEL0}, 0x05040100
    s_mov_b32 s{SEL1}, 0x07060302
    s_mov_b32 s{CDIS}, {DIS}
    s_mov_b32 s{CCNT}, {SEM + CNT}
    s_mov_b32 s{CSIMG}, {SIMG}
    s_movk_i32 s{C512}, 512
    s_mov_b32 s{MODE}, 0
    s_mov_b32 s{TL}, 0
    s_mov_b32 s{TR}, 0""")
    p(f"""v_and_b32 v{AT+1}, 15, v{LANE}
    v_lshlrev_b32 v{CG16}, 4, v{AT+1}
    v_lshlrev_b32 v{P0}, 1, v{AT}
    v_cmp_eq_u32 vcc, v{P0}, v{AT+1}
    v_add_u32 v{P0+1}, 1, v{P0}
    v_cmp_eq_u32 s[72:73], v{P0+1}, v{AT+1}
    v_lshrrev_b32 v{P0+2}, 1, v{AT}
    v_add_u32 v{P0+2}, 8, v{P0+2}
    v_cmp_eq_u32 s[74:75], v{P0+2}, v{AT+1}
    v_cndmask_b32_e64 v{M0}, 0, -1, vcc
    v_cndmask_b32_e64 v{M1}, 0, -1, s[72:73]
    v_cndmask_b32_e64 v{M2}, 0, -1, s[74:75]
    s_mul_i32 s{T0}, s{W}, 10""")
    for e in range(3):
        p(f"""v_add_u32 v{P1}, s{T0}, v{P0+e}
        v_and_b32 v{P1+1}, 7, v{P1}
        v_xor_b32 v{P1+1}, v{P1+1}, v{AT+1}
        v_lshlrev_b32 v{P1+1}, 4, v{P1+1}
        v_lshl_add_u32 v{P1+1}, v{P1}, 9, v{P1+1}
        v_add_u32 v{QKA+e}, {XB}, v{P1+1}""")
    p(f"""v_add_u32 v{P1}, s{T0}, v{AT+1}
    v_and_b32 v{P1+1}, 15, v{P1}
    v_lshrrev_b32 v{P1+2}, 4, v{P1}
    v_lshlrev_b32 v{P1+2}, 10, v{P1+2}
    v_lshl_add_u32 v{P1+2}, v{P1+1}, 4, v{P1+2}
    v_lshl_add_u32 v{P1+3}, v{AT}, 8, v{P1+2}
    v_lshl_add_u32 v{P1+2}, v{AT}, 7, v{P1+2}
    v_cmp_gt_u32 vcc, 32, v{P1}
    s_mul_i32 s{T1}, s2, 40
    v_add_u32 v{DISD}, s{T1}, v{P1}
    v_cndmask_b32_e64 v{FW}, v{P1+2}, v{P1+3}, vcc
    v_add_u32 v{FW}, {YB}, v{FW}
    v_lshl_add_u32 v{DISD}, v{DISD}, 1, s{CDIS}""")
    stamp(14)
    p(f"""s_waitcnt lgkmcnt(0)
    s_barrier""")
    stamp(15)
    p(f"""s_cmp_ge_u32 s2, {NPROD}
    s_cbranch_scc1 L_A_nobin
    s_waitcnt vmcnt(4)""")
    stamp(16)
    p(f"""s_call_b64 s[{LINK}:{LINK+1}], L_bin""")
    stamp(17)
    p(f"""v_lshl_add_u32 v{P0}, s{W}, 6, v{LANE}
    v_lshlrev_b32 v{P0+1}, 4, v{P0}
    v_add_u32 v{P0+1}, {IMG}, v{P0+1}""")
    for k in range(8): p(f"ds_read_b128 {v(ACC+4*k,4)}, v{P0+1} offset:{k*4096}")
    p(f"""v_lshrrev_b32 v{P0+2}, 3, v{P0}
    v_and_b32 v{P0+3}, 7, v{P0}
    v_lshlrev_b32 v{P0+2}, 13, v{P0+2}
    v_lshlrev_b32 v{P0+3}, 4, v{P0+3}
    s_lshl_b32 s{T0}, s2, 7
    v_add3_u32 v{P0+2}, v{P0+2}, v{P0+3}, s{T0}
    s_waitcnt vmcnt(0)
    v_readfirstlane_b32 s{TAGP}, v15
    s_lshr_b32 s{TAGP}, s{TAGP}, 20
    s_add_u32 s{TAGP}, s{TAGP}, {TAGINC}
    s_lshl_b32 s{TAGP}, s{TAGP}, 20
    s_mov_b32 s{T0}, 0""")
    for k in range(8):
        p(f"s_waitcnt lgkmcnt({7-k})")
        for d in range(4): p(f"v_or_b32 v{ACC+4*k+d}, s{TAGP}, v{ACC+4*k+d}")
        p(f"buffer_store_dwordx4 {v(ACC+4*k,4)}, v{P0+2}, s[{SRD_WS}:{SRD_WS+3}], s{T0} offen sc1")
        if k < 7: p(f"s_add_u32 s{T0}, s{T0}, {32*8192}")
    signal(S_CPY)
    stamp(1)
    p("s_branch L_A_rows")
    p.label("L_A_nobin")
    p(f"""s_waitcnt vmcnt(0)
    v_readfirstlane_b32 s{TAGP}, v15
    s_lshr_b32 s{TAGP}, s{TAGP}, 20
    s_add_u32 s{TAGP}, s{TAGP}, {TAGINC}
    s_lshl_b32 s{TAGP}, s{TAGP}, 20""")
    p.label("L_A_rows")
    stamp(18)
    for i in range(8):
        p(f"""v_lshl_add_u32 v{AD+i}, v{EN+i}, 9, v{CG16}
        buffer_load_dwordx4 {v(H[0]+4*i,4)}, v{AD+i}, s[{SRD_X}:{SRD_X+3}], 0 offen
        buffer_load_dwordx4 {v(H[1]+4*i,4)}, v{AD+i}, s[{SRD_X}:{SRD_X+3}], 0 offen offset:256""")
    for i in range(2):
        p(f"""v_lshl_add_u32 v{IDX+i}, v{DV+i}, 9, v{CG16}
        buffer_load_dwordx4 {v(H[2]+8*i,4)}, v{IDX+i}, s[{SRD_X}:{SRD_X+3}], 0 offen
        buffer_load_dwordx4 {v(H[2]+8*i+4,4)}, v{IDX+i}, s[{SRD_X}:{SRD_X+3}], 0 offen offset:256""")
    p(f"global_load_dword v15, v{ZERO}, s[26:27] sc1")
    stamp(2)
    p(f"""s_cmp_ge_u32 s2, {NPROD}
    s_cbranch_scc1 L_A_nocpy""")
    semwait(S_CPY, 4, AT)
    p.label("L_A_nocpy")
    p(f"""v_lshlrev_b32 v{P0}, 4, v{LANE}
    s_mul_i32 s{T0}, s{W}, 5120
    s_add_u32 s{T1}, s{T0}, {DIS}""")
    for k in range(5):
        p(f"""s_add_u32 m0, s{T1}, {k*1024}
        s_nop 0
        buffer_load_dwordx4 v{P0}, s[{SRD_DIS}:{SRD_DIS+3}], s{T0} offen lds""")
        if k < 4: p(f"s_add_u32 s{T0}, s{T0}, 1024")
    p(f"""v_lshrrev_b32 v{AT}, 4, v{LANE}
    s_lshl_b32 s{T0}, s{W}, 8
    s_add_u32 s{T0}, s{T0}, {SIMG}
    v_lshl_add_u32 v{SRD_}, v{AT}, 10, v{CG16}
    v_add_u32 v{SRD_}, s{T0}, v{SRD_}
    v_or_b32 v{LRD}, 240, v{SRD_}""")
    p(f"s_call_b64 s[{LINK}:{LINK+1}], L_init")
    p(f"""v_mov_b32 v{P1+1}, 0
    v_mov_b32 v{P1+3}, 0
    v_mov_b32 v{P0+1}, 0
    v_mov_b32 v{P0+3}, 0
    v_mov_b32 v{S1+1}, 0
    s_waitcnt vmcnt(0)
    v_readfirstlane_b32 s{T0}, v15""")
    signal(S_I)
    p(f"""s_bitcmp1_b32 s{T0}, 16
    s_cbranch_scc0 L_A_tagok
    s_add_u32 s{T0}, s{T0}, {TAGINC}
    s_lshl_b32 s{TAGP}, s{T0}, 20""")
    p.label("L_A_tagok")
    p(f"""s_lshl_b32 s{T0}, s{W}, 11
    s_lshl_b32 s{T1}, s2, 13
    s_add_u32 s{T0}, s{T0}, s{T1}
    v_lshlrev_b32 v15, 4, v{LANE}
    v_add_u32 v15, s{T0}, v15""")
    stamp(3)
    semwait(S_QK, 4, AT)
    stamp(4)
    p(f"""buffer_load_dwordx4 {v(EN,4)}, v15, s[{SRD_WS}:{SRD_WS+3}], 0 offen sc1
    buffer_load_dwordx4 {v(EN+4,4)}, v15, s[{SRD_WS}:{SRD_WS+3}], 0 offen offset:1024 sc1""")
    QK0 = H[3]
    for e in range(3):
        for h in range(2):
            p(f"ds_read_b128 {v(QK0+8*e+4*h,4)}, v{QKA+e} offset:{h*256}")
    def raw(i, h, d): return (H[h] + 4*i + d) if i < 8 else (H[2] + 8*(i-8) + 4*h + d)
    for e, slots in ((0, range(0, 4)), (1, range(4, 8)), (2, range(8, 10))):
        p(f"s_waitcnt lgkmcnt({4-2*e})")
        for h in range(2):
            for d in range(4):
                for i in slots:
                    q = QK0 + 8*e + 4*h + d
                    if h == 0 and d == 0: p(f"v_dot2_f32_bf16 v{DV+i}, v{raw(i,h,d)}, v{q}, 0")
                    else: p(f"v_dot2c_f32_bf16 v{DV+i}, v{raw(i,h,d)}, v{q}")
    for rot in (8, 4, 2, 1):
        for i in range(10):
            p(f"v_add_f32_dpp v{DV+i}, v{DV+i}, v{DV+i} row_ror:{rot} row_mask:0xf bank_mask:0xf")
    p(f"s_mov_b32 s{T0}, 0x3db8aa3b")
    for i in range(10): p(f"v_mul_f32 v{DV+i}, s{T0}, v{DV+i}")
    for i in range(10): p(f"v_exp_f32 v{DV+i}, v{DV+i}")
    p(f"""s_mov_b32 s{T0}, 0x3089705f
    v_add_f32 v{AT}, v{DV+8}, v{DV+9}
    v_add_f32 v{S0}, v{DV}, v{DV+1}
    v_add_f32 v{S0+1}, v{DV+2}, v{DV+3}
    v_mov_b32 v{AT+1}, v{AT}
    v_add_f32 v{S0+2}, v{DV+4}, v{DV+5}
    v_add_f32 v{S0+3}, v{DV+6}, v{DV+7}
    v_permlane16_swap_b32 v{AT}, v{AT+1}
    v_add_f32 v{S0}, v{S0}, v{S0+1}""")
    p(f"""v_add_f32 v{S0+2}, v{S0+2}, v{S0+3}
    v_add_f32 v{AT}, v{AT}, v{AT+1}
    v_add_f32 v{S0}, s{T0}, v{S0}
    v_add_f32 v{S0+2}, s{T0}, v{S0+2}
    v_add_f32 v{AT}, s{T0}, v{AT}
    v_rcp_f32 v{S0}, v{S0}
    v_rcp_f32 v{S0+2}, v{S0+2}
    v_rcp_f32 v{AT}, v{AT}""")
    for i in range(10):
        r = S0 if i < 4 else (S0+2 if i < 8 else AT)
        p(f"v_mul_f32 v{DV+i}, v{r}, v{DV+i}")
    for k in range(4):
        p(f"v_cvt_pk_bf16_f32 v{S0+k}, v{DV+2*k}, v{DV+2*k+1}")
    p(f"v_cvt_pk_bf16_f32 v{S1}, v{DV+8}, v{DV+9}")
    for k in range(4): p(f"v_and_b32 v{S0+k}, v{M0 if k < 2 else M1}, v{S0+k}")
    p(f"v_and_b32 v{S1}, v{M2}, v{S1}")
    stamp(5)
    pp = [P0, P0+2, P1, P1+2]
    def perm1(n):
        h, t = n >> 3, n & 7
        p(f"v_perm_b32 v{pp[n % 4]}, v{raw(9,h,t>>1)}, v{raw(8,h,t>>1)}, s{SEL1 if t&1 else SEL0}")
    perm1(0); perm1(1)
    for n in range(16):
        if n + 2 < 16: perm1(n+2)
        a = ACC + 4*n
        p(f"v_mfma_f32_16x16x16_bf16 {v(a,4)}, {v(pp[n % 4],2)}, {v(S1,2)}, 0")
    p(f"""s_mov_b32 s{RHO}, 0
    s_call_b64 s[{LINK}:{LINK+1}], L_agg
    s_call_b64 s[{LINK}:{LINK+1}], L_wout""")
    signal(S_AA)
    stamp(6)
    p(f"v_add_u32 v{FW}, {(XB - YB) & 0xffffffff}, v{FW}")
    p.label("L_poll")
    p("s_waitcnt vmcnt(0)")
    for k in range(8): p(f"v_xor_b32 v{EN+k}, s{TAGP}, v{EN+k}")
    p(f"""v_max3_u32 v{AT}, v{EN}, v{EN+1}, v{EN+2}
    v_max3_u32 v{AT+1}, v{EN+3}, v{EN+4}, v{EN+5}
    v_max3_u32 v{AT}, v{AT}, v{EN+6}, v{EN+7}
    v_max_u32 v{AT}, v{AT}, v{AT+1}
    v_cmp_lt_u32 vcc, 0xfffff, v{AT}
    s_cmp_eq_u64 vcc, 0
    s_cbranch_scc1 L_got
    s_add_u32 s93, s93, 16
    s_cmp_ge_u32 s93, {SPIN_MAX}
    s_cbranch_scc1 L_end
    s_sleep 1
    buffer_load_dwordx4 {v(EN,4)}, v15, s[{SRD_WS}:{SRD_WS+3}], 0 offen sc1
    buffer_load_dwordx4 {v(EN+4,4)}, v15, s[{SRD_WS}:{SRD_WS+3}], 0 offen offset:1024 sc1
    s_branch L_poll""")
    p.label("L_got")
    stamp(7)
    semwait(S_I, 4, AT+1)
    p(f"""ds_read_u16 v{DISD}, v{DISD}
    v_mov_b32 v{DV+9}, 0
    v_cmp_lt_u32 vcc, {EMPTY + opt.slot_cap}, v{AT}""")
    if opt.force_slow: p("s_mov_b64 vcc, -1")
    p(f"""s_cmp_lg_u64 vcc, 0
    s_cselect_b32 s{T2}, 0x10000, 0""")
    p.label("L_fill")
    FS, F0, FL, FP, FWt = H[2], H[2]+8, H[2]+16, H[2]+24, H[3]
    p(f"s_mov_b32 s{T0}, {EMPTY}")
    for k in range(8):
        p(f"""v_and_b32 v{FS+k}, 0x3fff, v{EN+k}
        v_cmp_gt_u32 s[{MK+2*k}:{MK+2*k+1}], s{T0}, v{EN+k}
        v_lshl_add_u32 v{FWt+k}, v{FS+k}, 1, s{CDIS}
        v_lshrrev_b32 v{FP+k}, 18, v{EN+k}
        v_lshl_add_u32 v{FP+k}, v{FP+k}, 2, s{CCNT}
        v_lshrrev_b32 v{F0+k}, 10, v{EN+k}
        s_mov_b64 exec, s[{MK+2*k}:{MK+2*k+1}]
        ds_read_u16 v{FWt+k}, v{FWt+k}
        ds_add_rtn_u32 v{FP+k}, v{FP+k}, v{ONE}
        s_mov_b64 exec, -1
        v_and_b32 v{F0+k}, 0x3f0, v{F0+k}
        v_or_b32 v{FL+k}, 240, v{F0+k}""")
    for k in range(8):
        p(f"""s_mov_b64 exec, s[{MK+2*k}:{MK+2*k+1}]
        s_waitcnt lgkmcnt(14)
        v_max_u32 v{DV+9}, v{DV+9}, v{FP+k}
        v_min_u32 v{FP+k}, 255, v{FP+k}
        v_lshlrev_b32 v{AT}, 1, v{FP+k}
        v_lshrrev_b32 v{FP+k}, 3, v{FP+k}
        v_and_or_b32 v{AT}, v{AT}, 14, s{CSIMG}
        v_lshl_add_u32 v{AT}, v{FP+k}, 10, v{AT}
        v_add_u32 v{F0+k}, v{F0+k}, v{AT}
        v_add_u32 v{FL+k}, v{FL+k}, v{AT}
        ds_write_b16 v{F0+k}, v{FWt+k}
        ds_write_b16 v{FL+k}, v{FS+k}""")
    p(f"""s_mov_b64 exec, -1
    v_cmp_lt_u32 vcc, 255, v{DV+9}
    s_or_b32 s{T1}, s{T2}, 0x10000
    s_cmp_lg_u64 vcc, 0
    s_cselect_b32 s{T2}, s{T1}, s{T2}
    s_add_u32 s{T2}, s{T2}, 1
    v_mov_b32 v{AT}, s{T2}
    s_add_u32 s{TL}, s{TL}, 4""")
    signal(S_L, AT)
    semwait(S_L, f"s{TL}", AT, mask=0xffff, keep=T1)
    p(f"""s_lshr_b32 s{T1}, s{T1}, 16
    s_cmp_eq_u32 s{MODE}, 0
    s_cselect_b32 s{T1}, s{T1}, 0
    s_cmp_lg_u32 s{T1}, 0
    s_cbranch_scc1 L_slow_enter
    s_lshl_b32 s{T0}, s{W}, 2
    v_mov_b32 v{AT}, s{T0}
    v_add_u32 v{AT}, s{CCNT}, v{AT}
    ds_read_b32 v{AT}, v{AT}
    ds_read_b128 {v(IDX,4)}, v{LRD}
    ds_read_b128 {v(P0,4)}, v{LRD} offset:4096
    ds_read_b128 {v(S0,4)}, v{SRD_}
    ds_read_b128 {v(S1,4)}, v{SRD_} offset:4096
    s_waitcnt lgkmcnt(4)
    v_readfirstlane_b32 s{RHO}, v{AT}
    s_add_u32 s{RHO}, s{RHO}, 31
    s_lshr_b32 s{RHO}, s{RHO}, 5
    s_cmp_eq_u32 s{RHO}, 0
    s_cbranch_scc1 L_round_done
    s_sub_u32 s{RHO}, s{RHO}, 1
    s_waitcnt lgkmcnt(3)""")
    def addrs(src):
        for i in range(8):
            sel = " op_sel:[1,0,0,0]" if i & 1 else ""
            p(f"v_mad_u32_u16 v{AD+i}, v{src + (i>>1)}, s{C512}, v{CG16}{sel}")
    def loads(u, h):
        for i in range(8):
            p(f"buffer_load_dwordx4 {v(H[u]+4*i,4)}, v{AD+i}, s[{SRD_X}:{SRD_X+3}], 0 offen" + (" offset:256" if h else ""))
    addrs(IDX); loads(0, 0); loads(1, 1)
    p(f"""s_cmp_eq_u32 s{RHO}, 0
    s_cbranch_scc1 L_pro_done
    s_waitcnt lgkmcnt(2)""")
    addrs(P0); loads(2, 0); loads(3, 1)
    p.label("L_pro_done")
    p(f"""ds_read_b128 {v(IDX,4)}, v{LRD} offset:8192
    v_add_u32 v{LRD}, {3*4096}, v{LRD}
    v_add_u32 v{SRD_}, {2*4096}, v{SRD_}
    s_cmp_lg_u32 s{MODE}, 0
    s_cbranch_scc1 L_nozero""")
    for i in range(64): p(f"v_mov_b32 v{ACC+i}, 0")
    p.label("L_nozero")
    stamp(8)
    p(f"s_call_b64 s[{LINK}:{LINK+1}], L_agg")
    p("s_branch L_round_end")
    p.label("L_round_done")
    p(f"""s_waitcnt lgkmcnt(0)
    s_cmp_lg_u32 s{MODE}, 0
    s_cbranch_scc1 L_round_end""")
    for i in range(64): p(f"v_mov_b32 v{ACC+i}, 0")
    p.label("L_round_end")
    p(f"""s_cmp_lg_u32 s{MODE}, 0
    s_cbranch_scc1 L_slow_next""")
    p.label("L_A_tail")
    stamp(9)
    p(f"""s_waitcnt lgkmcnt(0)
    v_lshlrev_b32 v{DISD}, 16, v{DISD}
    s_nop 4""")
    for i in range(32):
        p(f"v_pk_mul_f32 {v(ACC+2*i,2)}, {v(ACC+2*i,2)}, {v(DISD,2)} op_sel_hi:[1,0]")
    p(f"s_call_b64 s[{LINK}:{LINK+1}], L_wout")
    signal(S_AL)
    stamp(10)
    p("s_branch L_final")

    p.label("L_slow_enter")
    for i in range(64): p(f"v_mov_b32 v{ACC+i}, 0")
    srd(SRD_SRC, 6, 640000)
    srd(SRD_DST, 8, 640000)
    p(f"s_mov_b32 s{MODE}, 0")
    p.label("L_slow_next")
    p(f"""s_cmp_eq_u32 s{MODE}, 625
    s_cbranch_scc1 L_A_tail
    s_lshl_b32 s{T0}, s{MODE}, 10
    s_add_u32 s{MODE}, s{MODE}, 1
    v_lshl_add_u32 v{AT}, s{W}, 6, v{LANE}
    v_lshlrev_b32 v{AT}, 2, v{AT}
    buffer_load_dword v{EN}, v{AT}, s[{SRD_SRC}:{SRD_SRC+3}], s{T0} offen
    buffer_load_dword v{EN+1}, v{AT}, s[{SRD_DST}:{SRD_DST+3}], s{T0} offen
    v_lshrrev_b32 v{AT}, 4, v{LANE}
    s_lshl_b32 s{T0}, s{W}, 8
    s_add_u32 s{T0}, s{T0}, {SIMG}
    v_lshl_add_u32 v{SRD_}, v{AT}, 10, v{CG16}
    v_add_u32 v{SRD_}, s{T0}, v{SRD_}
    v_or_b32 v{LRD}, 240, v{SRD_}
    s_waitcnt lgkmcnt(0)
    s_call_b64 s[{LINK}:{LINK+1}], L_init
    s_add_u32 s{TR}, s{TR}, 4""")
    signal(S_R)
    semwait(S_R, f"s{TR}", AT)
    p(f"""s_mul_i32 s{T0}, s2, 40
    s_waitcnt vmcnt(0)
    v_subrev_u32 v{EN+1}, s{T0}, v{EN+1}
    v_cmp_gt_u32 vcc, 40, v{EN+1}
    v_mul_u32_u24 v{AT}, 26, v{EN+1}
    v_lshrrev_b32 v{AT}, 8, v{AT}
    v_mad_u32_u24 v{AT}, v{AT}, 6, v{EN+1}
    v_lshl_or_b32 v{AT}, v{AT}, 14, v{EN}
    v_mov_b32 v{EN+1}, {EMPTY}
    v_cndmask_b32_e64 v{EN}, v{EN+1}, v{AT}, vcc""")
    for k in range(2, 8): p(f"v_mov_b32 v{EN+k}, {EMPTY}")
    p(f"""v_mov_b32 v{DV+9}, 0
    s_mov_b32 s{T2}, 0
    s_branch L_fill""")

    p.label("L_init")
    p(f"""v_and_b32 v{AT}, 15, v{LANE}
    v_cmp_eq_u32 vcc, 15, v{AT}
    s_lshl_b32 s{T0}, s{W}, 2
    s_add_u32 s{T0}, s{T0}, s{CCNT}
    v_mov_b32 v{AT+1}, s{T0}
    v_cndmask_b32_e64 v{S0}, 0, -1, vcc
    v_cndmask_b32_e64 v{S0+1}, 0, -1, vcc
    v_cndmask_b32_e64 v{S0+2}, 0, -1, vcc
    v_cndmask_b32_e64 v{S0+3}, 0, -1, vcc
    ds_write_b32 v{AT+1}, v{ZERO}""")
    for k in range(8): p(f"ds_write_b128 v{SRD_}, {v(S0,4)} offset:{k*4096}")
    p(f"s_setpc_b64 s[{LINK}:{LINK+1}]")

    p.label("L_wout")
    p("""s_nop 7
    s_mov_b32 exec_lo, 0x03ff03ff
    s_mov_b32 exec_hi, 0x03ff03ff""")
    for h in range(2):
        for r in range(4):
            d = P0 if r % 2 == 0 else P1
            for k in range(4):
                p(f"v_cvt_pk_bf16_f32 v{d+k}, v{ACC+(8*h+2*k)*4+r}, v{ACC+(8*h+2*k+1)*4+r}")
            p(f"ds_write_b128 v{FW}, {v(d,4)} offset:{(4*h+r)*2560}")
    p(f"""s_mov_b64 exec, -1
    s_setpc_b64 s[{LINK}:{LINK+1}]""")

    def perms(u, t, P):
        for q in range(4):
            p(f"v_perm_b32 v{P+q}, v{H[u]+4*(2*q+1)+(t>>1)}, v{H[u]+4*(2*q)+(t>>1)}, s{SEL1 if t&1 else SEL0}")
    def CB(u, S):
        h = u & 1
        perms(u, 0, P0)
        for t in range(8):
            if t < 7: perms(u, t+1, P1 if t % 2 == 0 else P0)
            a = ACC + (8*h + t)*4
            p(f"v_mfma_f32_16x16x32_bf16 {v(a,4)}, {v(P0 if t % 2 == 0 else P1,4)}, {v(S,4)}, {v(a,4)}")
    p.label("L_agg")
    for pi in range(2):
        S = S0 if pi == 0 else S1
        L1, L2, L3, L4, L5 = newl("a"), newl("a"), newl("a"), newl("a"), newl("a")
        p(f"""s_cmp_eq_u32 s{RHO}, 0
        s_waitcnt vmcnt(24) lgkmcnt(1)
        s_cbranch_scc0 {L1}
        s_waitcnt vmcnt(8)""")
        p.label(L1)
        CB(2*pi, S)
        p(f"""s_cmp_lt_u32 s{RHO}, 2
        s_cbranch_scc1 {L2}
        s_waitcnt lgkmcnt(0)""")
        addrs(IDX); loads(2*pi, 0)
        p(f"""ds_read_b128 {v(IDX,4)}, v{LRD}
        v_add_u32 v{LRD}, 4096, v{LRD}
        s_waitcnt vmcnt(24)
        s_branch {L3}""")
        p.label(L2)
        p(f"""s_cmp_eq_u32 s{RHO}, 0
        s_waitcnt vmcnt(16)
        s_cbranch_scc0 {L3}
        s_waitcnt vmcnt(0)""")
        p.label(L3)
        CB(2*pi+1, S)
        p(f"""s_cmp_lt_u32 s{RHO}, 2
        s_cbranch_scc1 {L4}""")
        loads(2*pi+1, 1)
        p(f"""ds_read_b128 {v(S,4)}, v{SRD_}
        v_add_u32 v{SRD_}, 4096, v{SRD_}""")
        p.label(L4)
        p(f"""s_cmp_eq_u32 s{RHO}, 0
        s_cbranch_scc1 L_agg_ret
        s_sub_u32 s{RHO}, s{RHO}, 1""")
        if pi == 1: p("s_branch L_agg")
    p.label("L_agg_ret")
    p(f"s_setpc_b64 s[{LINK}:{LINK+1}]")

    p.label("L_final")
    p(f"""v_lshrrev_b32 v4, 5, v{LANE}
    s_lshl_b32 s{T0}, s{WV}, 1
    v_add_u32 v4, s{T0}, v4
    v_and_b32 v5, 31, v{LANE}
    v_lshrrev_b32 v6, 3, v5
    v_xor_b32 v7, v4, v5
    v_and_b32 v7, 7, v7
    v_lshlrev_b32 v7, 4, v7
    v_lshl_add_u32 v7, v4, 7, v7
    v_lshl_add_u32 v7, v6, 14, v7
    v_lshrrev_b32 v6, 1, v6
    v_lshl_add_u32 v7, v6, 7, v7
    v_lshlrev_b32 v5, 4, v5
    v_lshl_add_u32 v5, v4, 9, v5
    s_mul_i32 s{T0}, s2, 20480
    s_add_u32 s{T1}, s{T0}, 8192
    s_add_u32 s{T2}, s{T0}, 16384
    s_waitcnt lgkmcnt(0)
    s_barrier
    ds_read_b128 v[8:11], v7 offset:{RING}
    ds_read_b128 v[12:15], v7 offset:{RING+2048}
    s_cmp_ge_u32 s{WV}, 4
    s_cbranch_scc1 L_fin2
    ds_read_b128 v[16:19], v7 offset:{RING+4096}
    s_waitcnt lgkmcnt(0)
    buffer_store_dwordx4 v[16:19], v5, s[{SRD_OUT}:{SRD_OUT+3}], s{T2} offen""")
    p.label("L_fin2")
    p(f"""s_waitcnt lgkmcnt(0)
    buffer_store_dwordx4 v[8:11], v5, s[{SRD_OUT}:{SRD_OUT+3}], s{T0} offen
    buffer_store_dwordx4 v[12:15], v5, s[{SRD_OUT}:{SRD_OUT+3}], s{T1} offen""")
    stamp(11)
    stamp_out()
    stretch()
    p("s_endpgm")

    p.label("L_upd")
    p(f"""s_cmp_lg_u32 s{WV}, 0
    s_cbranch_scc1 L_end
    s_waitcnt lgkmcnt(0)
    global_load_dword v15, v{ZERO}, s[28:29] sc1
    s_add_u32 s60, s28, {SLOT0 + NWG*8192}
    s_addc_u32 s61, s29, 0
    s_mov_b32 s62, 8192
    s_mov_b32 s63, 0x20000
    v_lshlrev_b32 v4, 4, v{LANE}
    s_movk_i32 s{T1}, 4096
    s_waitcnt vmcnt(0)
    v_readfirstlane_b32 s64, v15
    s_lshr_b32 s64, s64, 20
    s_add_u32 s65, s64, {TAGINC}
    s_lshl_b32 s65, s65, 20""")
    p.label("L_upd_poll")
    for k in range(8):
        p(f"buffer_load_dwordx4 {v(16+4*k,4)}, v4, s[60:63], {'0' if k < 4 else 's%d' % T1} offen offset:{(k&3)*1024} sc1")
    p("s_waitcnt vmcnt(0)")
    for k in range(32): p(f"v_xor_b32 v{16+k}, s65, v{16+k}")
    for k in range(1, 31, 2): p(f"v_max3_u32 v16, v16, v{16+k}, v{17+k}")
    p(f"""v_max_u32 v16, v16, v47
    v_cmp_lt_u32 vcc, 0xfffff, v16
    s_cmp_eq_u64 vcc, 0
    s_cbranch_scc1 L_upd_go
    s_add_u32 s93, s93, 16
    s_cmp_ge_u32 s93, {SPIN_MAX}
    s_cbranch_scc1 L_end
    s_sleep 8
    s_branch L_upd_poll""")
    p.label("L_upd_go")
    p(f"""s_or_b32 s64, s64, 0x10000
    v_mov_b32 v5, s64
    v_mov_b32 v6, s65
    s_mov_b64 exec, 1
    global_store_dword v{ZERO}, v5, s[26:27] sc0 sc1
    s_waitcnt vmcnt(0)
    global_store_dword v{ZERO}, v6, s[28:29] sc0 sc1""")
    p.label("L_end")
    p("s_endpgm")

    a, b = p.finish()
    hdr = open(os.path.join(os.path.dirname(os.path.abspath(__file__)), "header.txt")).read()
    out = hdr + f"; @launch grid=({NWG+1},1,1) block=(512,1,1) lds={LDS_TOTAL}\n"
    out += f""".amdgcn_target "amdgcn-amd-amdhsa--gfx950"
.text
.globl {KNAME}
.p2align 8
.type {KNAME},@function
{KNAME}:
"""
    out += p.text()
    out += f""".section .rodata,"a"
.p2align 6
.amdhsa_kernel {KNAME}
  .amdhsa_next_free_vgpr 256
  .amdhsa_next_free_sgpr 102
  .amdhsa_accum_offset 256
  .amdhsa_group_segment_fixed_size 0
  .amdhsa_kernarg_size 104
  .amdhsa_user_sgpr_count 2
  .amdhsa_user_sgpr_kernarg_segment_ptr 1
  .amdhsa_system_sgpr_workgroup_id_x 1
  .amdhsa_float_denorm_mode_32 3
.end_amdhsa_kernel
"""
    sys.stderr.write(f"auto nops: linear {a}, edges {b}; {sum(1 for i in p.ins if i.states)} instructions\n")
    return out

if __name__ == "__main__":
    import argparse
    ap = argparse.ArgumentParser()
    ap.add_argument("-o", default="gather_scatter__hybrid_graph_tf_exphormer__graph.s")
    ap.add_argument("--stamps", action="store_true")
    ap.add_argument("--dbgstamps", action="store_true")
    ap.add_argument("--stretch", default="")
    ap.add_argument("--force-slow", action="store_true")
    ap.add_argument("--slot-cap", type=int, default=31)
    a = ap.parse_args()
    Opt.stamps = a.stamps or a.dbgstamps; Opt.dbgstamps = a.dbgstamps; Opt.force_slow = a.force_slow
    if a.stretch: Opt.stretch = [int(x) for x in a.stretch.split(',')]; Opt.stamps = True
    Opt.slot_cap = a.slot_cap
    open(a.o, "w").write(build())
```

```python
import sys, os
sys.path.insert(0, os.path.dirname(os.path.abspath(__file__)))
from asmlib import Prog

KNAME = "gather_scatter__hybrid_graph_tf_exphormer__graph_kernel"

SEM = 0
RING = 256
XB = RING + 65536
YB = XB + 20480
ZB = YB + 20480
IMG = ZB
DIS = ZB
SIMG = ZB + 20480
LDS_TOTAL = SIMG + 32768
S_X, S_Q, S_QK, S_AA, S_AL, S_CPY, S_I, S_L, CNT, S_R = 0, 4, 8, 12, 16, 20, 24, 28, 32, 48
assert IMG + 32768 <= LDS_TOTAL and LDS_TOTAL <= 163840

NWG = 250
NPROD = 64
SLOT0 = 65536
STAMP0 = 8 << 20
EMPTY = 0xFC000
TAGINC = 0x2C5
SPIN_MAX = 1 << 21

def v(n, c=1): return f"v{n}" if c == 1 else f"v[{n}:{n+c-1}]"
def s(n, c=1): return f"s{n}" if c == 1 else f"s[{n}:{n+c-1}]"

class Opt:
    stamps = False
    dbgstamps = False
    stretch = None
    force_slow = False
    slot_cap = 31

def build(opt=Opt):
    p = Prog()
    lbl = [0]
    def newl(n):
        lbl[0] += 1
        return f"L_{n}_{lbl[0]}"

    TID, LANE, ZERO, ONE = 0, 1, 2, 3
    SEMA = ZERO
    WV, LINK, W = 3, 30, 32
    T0, T1, T2 = 33, 34, 35
    SRD_X, SRD_OUT, SRD_SRC, SRD_DST = 36, 40, 44, 48
    STAMP = 90

    nstamp = [0]
    def stamp(slot):
        if not opt.stamps: return
        p(f"""s_memrealtime s[90:91]
        s_waitcnt lgkmcnt(0)
        v_writelane_b32 v0, s90, {slot}""")
    def stamp_out():
        if not opt.stamps: return
        p(f"""s_lshl_b32 s92, s2, 3
        s_add_u32 s92, s92, s{WV}
        s_lshl_b32 s92, s92, 7
        s_add_u32 s92, s92, {STAMP0}
        v_lshlrev_b32 v20, 2, v{LANE}
        v_add_u32 v20, s92, v20
        s_mov_b32 exec_hi, 0
        global_store_dword v20, v0, s[28:29]
        s_mov_b64 exec, -1""")
        if opt.dbgstamps:
            L = newl("dbg")
            p(f"""s_and_b32 s90, s{WV}, 3
            s_cmp_lg_u32 s90, 0
            s_cbranch_scc1 {L}
            s_and_b32 s90, s2, 127
            s_cmp_lg_u32 s90, 100
            s_cbranch_scc1 {L}
            v_readlane_b32 s90, v0, 0
            s_nop 3
            v_subrev_u32 v21, s90, v0
            v_lshrrev_b32 v21, 4, v21
            v_min_u32 v21, 255, v21
            s_lshr_b32 s90, s{WV}, 2
            s_mul_i32 s90, s90, 12
            s_add_u32 s90, s90, 4
            s_lshr_b32 s91, s2, 7
            s_mul_i32 s91, s91, 24
            s_add_u32 s90, s90, s91
            v_add_u32 v22, s90, v{LANE}
            s_mov_b64 exec, 0xfff
            global_store_byte v22, v21, s[26:27]
            s_mov_b64 exec, -1""")
            p.label(L)

    def stretch():
        if not opt.stretch: return
        wv, sa, sb, mult = opt.stretch
        L = newl("st"); L2 = newl("st")
        if sa < 0:
            p(f"""s_cmp_lg_u32 s{WV}, {wv}
            s_cbranch_scc1 {L}
            global_load_dword v21, v{ZERO}, s[28:29] offset:64 sc1
            s_waitcnt vmcnt(0)
            v_readfirstlane_b32 s90, v21
            v_readlane_b32 s91, v0, {sb}
            v_readlane_b32 s94, v0, 11
            {"s_mov_b32 s90, s94" if sa == -2 else ""}
            s_sub_u32 s90, s91, s90
            s_max_i32 s90, s90, 0
            s_mul_i32 s90, s90, {mult}
            s_min_u32 s90, s90, 200000""")
            p.label(L2)
            p(f"""s_memrealtime s[96:97]
            s_waitcnt lgkmcnt(0)
            s_sub_u32 s96, s96, s94
            s_cmp_lt_u32 s96, s90
            s_cbranch_scc1 {L2}""")
            p.label(L)
            return
        p(f"""s_cmp_lg_u32 s2, 100
        s_cbranch_scc1 {L}
        s_cmp_lg_u32 s{WV}, {wv}
        s_cbranch_scc1 {L}
        v_readlane_b32 s90, v0, {sa}
        v_readlane_b32 s91, v0, {sb}
        v_readlane_b32 s94, v0, 11
        s_sub_u32 s90, s91, s90
        s_mul_i32 s90, s90, {mult}
        s_min_u32 s90, s90, 200000""")
        p.label(L2)
        p(f"""s_memrealtime s[96:97]
        s_waitcnt lgkmcnt(0)
        s_sub_u32 s96, s96, s94
        s_cmp_lt_u32 s96, s90
        s_cbranch_scc1 {L2}""")
        p.label(L)

    def srd(base, ptr, size):
        p(f"""s_mov_b32 s{base}, s{ptr}
        s_mov_b32 s{base+1}, s{ptr+1}
        s_mov_b32 s{base+2}, {size}
        s_mov_b32 s{base+3}, 0x20000""")

    def signal(off, val=ONE):
        p(f"""s_mov_b64 exec, 1
        ds_add_u32 v{SEMA}, v{val} offset:{off}
        s_mov_b64 exec, -1""")

    def semwait(off, target, tmpv, mask=None, keep=None):
        L = newl("sw")
        p.label(L)
        p(f"""ds_read_b32 v{tmpv}, v{SEMA} offset:{off}
        s_waitcnt lgkmcnt(0)
        v_readfirstlane_b32 s{T0}, v{tmpv}""")
        if keep is not None: p(f"s_mov_b32 s{keep}, s{T0}")
        if mask is not None: p(f"s_and_b32 s{T0}, s{T0}, {mask}")
        L2 = newl("sd")
        p(f"""s_cmp_ge_u32 s{T0}, {target}
        s_cbranch_scc1 {L2}
        s_add_u32 s93, s93, 1
        s_cmp_lt_u32 s93, {SPIN_MAX}
        s_cbranch_scc1 {L}
        s_endpgm""")
        p.label(L2)

    p(f"""s_cmp_gt_u32 s2, {NWG}
    s_cbranch_scc1 L_end
    s_load_dwordx16 s[4:19], s[0:1], 0
    s_load_dwordx8 s[20:27], s[0:1], 64
    s_load_dwordx2 s[28:29], s[0:1], 96
    v_lshrrev_b32 v4, 6, v0
    v_and_b32 v{LANE}, 63, v0
    v_readfirstlane_b32 s{WV}, v4
    v_mov_b32 v{ZERO}, 0
    v_mov_b32 v{ONE}, 1
    s_mov_b32 s93, 0
    v_lshlrev_b32 v4, 2, v{LANE}
    s_cmp_eq_u32 s2, {NWG}
    s_cbranch_scc1 L_upd
    ds_write_b32 v4, v{ZERO}
    s_and_b32 s{W}, s{WV}, 3
    s_cmp_ge_u32 s2, {NPROD}
    s_cbranch_scc1 L_noimg
    v_mov_b32 v8, {EMPTY}
    v_mov_b32 v9, {EMPTY}
    v_mov_b32 v10, {EMPTY}
    v_mov_b32 v11, {EMPTY}
    v_lshlrev_b32 v4, 4, v0
    v_add_u32 v4, {IMG}, v4
    ds_write_b128 v4, v[8:11]
    ds_write_b128 v4, v[8:11] offset:8192
    ds_write_b128 v4, v[8:11] offset:16384
    ds_write_b128 v4, v[8:11] offset:24576
    v_lshlrev_b32 v4, 2, v0
    s_mul_i32 s{T0}, s2, 10000
    s_movk_i32 s{T1}, 4096
    s_movk_i32 s{T2}, 8192
    s_waitcnt lgkmcnt(0)""")
    BD, BS, BB, BH, BR, BT = 200, 205, 210, 215, 220, 225
    p(f"""s_add_u32 s{SRD_DST}, s8, s{T0}
    s_addc_u32 s{SRD_DST+1}, s9, 0
    s_mov_b32 s{SRD_DST+2}, 10000
    s_mov_b32 s{SRD_DST+3}, 0x20000
    s_add_u32 s{SRD_SRC}, s6, s{T0}
    s_addc_u32 s{SRD_SRC+1}, s7, 0
    s_mov_b32 s{SRD_SRC+2}, 10000
    s_mov_b32 s{SRD_SRC+3}, 0x20000""")
    for i, (so, im) in enumerate([("0", 0), ("0", 2048), (f"s{T1}", 0), (f"s{T1}", 2048), (f"s{T2}", 0)]):
        p(f"buffer_load_dword v{BD+i}, v4, s[{SRD_DST}:{SRD_DST+3}], {so} offen offset:{im}")
    for i, (so, im) in enumerate([("0", 0), ("0", 2048), (f"s{T1}", 0), (f"s{T1}", 2048), (f"s{T2}", 0)]):
        p(f"buffer_load_dword v{BS+i}, v4, s[{SRD_SRC}:{SRD_SRC+3}], {so} offen offset:{im}")
    p.label("L_noimg")
    p("s_waitcnt lgkmcnt(0)")
    if opt.stamps: p('v_mov_b32 v0, 0')
    stamp(0)
    if opt.stretch and opt.stretch[1] < 0:
        L = newl("w0")
        p(f"""s_add_u32 s90, s2, s{WV}
        s_cmp_lg_u32 s90, 0
        s_cbranch_scc1 {L}
        v_readlane_b32 s90, v0, 0
        s_nop 1
        v_mov_b32 v20, s90
        global_store_dword v{ZERO}, v20, s[28:29] offset:64 sc0 sc1
        s_waitcnt vmcnt(0)""")
        p.label(L)
    srd(SRD_X, 4, 5120000)
    srd(SRD_OUT, 24, 5120000)
    p(f"""s_cmp_ge_u32 s{WV}, 4
    s_cbranch_scc1 L_A""")

    DC, DK, DT = 4, 8, 12
    VT, VK, VB, VF01, VF2 = 16, 20, 22, 26, 27
    VQ01, VQ2, VQK, VOUT = 28, 29, 30, 34
    GT = 38
    PA, PB, QA, QB = 48, 64, 76, 92
    ACC1, ACC2 = 104, 152
    SRD_W, SRD_PF, SOFF, RB, IT = 52, 56, 60, 64, 65
    J, G4 = 240, 241

    p(f"""s_cmp_eq_u32 s{W}, 1
    s_cselect_b64 s[{SRD_PF}:{SRD_PF+1}], s[20:21], s[18:19]
    s_cmp_eq_u32 s{W}, 2
    s_cselect_b64 s[{SRD_PF}:{SRD_PF+1}], s[22:23], s[{SRD_PF}:{SRD_PF+1}]
    s_cmp_eq_u32 s{W}, 3
    s_cselect_b64 s[{SRD_PF}:{SRD_PF+1}], s[16:17], s[{SRD_PF}:{SRD_PF+1}]
    s_mov_b32 s{SRD_PF+2}, 131072
    s_mov_b32 s{SRD_PF+3}, 0x20000
    s_lshr_b32 s{T0}, s2, 3
    s_and_b32 s{T0}, s{T0}, 31
    s_lshl_b32 s{T0}, s{T0}, 12
    v_lshlrev_b32 v{GT}, 7, v{LANE}
    s_mov_b32 exec_hi, 0
    buffer_load_dword v{GT+1}, v{GT}, s[{SRD_PF}:{SRD_PF+3}], s{T0} offen
    s_mov_b32 exec_hi, -1""")
    stamp(12)
    p(f"""v_lshrrev_b32 v{GT+2}, 5, v{LANE}
    s_mul_i32 s{T0}, s{W}, 10
    v_add_u32 v{GT+2}, s{T0}, v{GT+2}
    v_and_b32 v{GT+3}, 31, v{LANE}
    s_mul_i32 s{T1}, s2, 20480
    s_mul_i32 s{T2}, s{W}, 5120
    s_add_u32 s{T2}, s{T2}, {XB}""")
    for k in range(5):
        p(f"""v_and_b32 v{GT+4}, 15, v{GT+2}
        v_xor_b32 v{GT+4}, v{GT+4}, v{GT+3}
        v_lshlrev_b32 v{GT+4}, 4, v{GT+4}
        v_lshl_add_u32 v{GT+4}, v{GT+2}, 9, v{GT+4}
        s_add_u32 m0, s{T2}, {k*1024}
        v_add_u32 v{GT+2}, 2, v{GT+2}
        buffer_load_dwordx4 v{GT+4}, s[{SRD_X}:{SRD_X+3}], s{T1} offen lds""")
    p(f"""v_lshrrev_b32 v{GT}, 3, v{LANE}
    v_and_b32 v{GT+2}, 7, v{LANE}
    v_and_b32 v{GT+3}, 2, v{GT}
    v_xor_b32 v{GT+3}, v{GT+3}, v{GT+2}
    v_lshlrev_b32 v{GT+4}, 9, v{GT}
    s_lshl_b32 s{T0}, s{W}, 7
    v_add_u32 v{GT+4}, s{T0}, v{GT+4}
    v_lshl_add_u32 v{DT}, v{GT+3}, 4, v{GT+4}
    v_xor_b32 v{GT+3}, 4, v{GT+3}
    v_lshl_add_u32 v{DT+1}, v{GT+3}, 4, v{GT+4}
    v_add_u32 v{DT+2}, {2*15360}, v{DT}
    v_add_u32 v{DT+3}, {3*15360}, v{DT+1}
    v_add_u32 v{DT+1}, {15360}, v{DT+1}
    s_lshl_b32 s{RB}, s{W}, 14
    s_add_u32 s{RB}, s{RB}, {RING}""")
    p(f"""s_mov_b32 s{SRD_W}, s18
    s_mov_b32 s{SRD_W+1}, s19
    s_mov_b32 s{SRD_W+2}, 131072
    s_mov_b32 s{SRD_W+3}, 0x20000""")

    def set_soff_T(h):
        for j in range(4): p(f"s_mov_b32 s{SOFF+j}, {j*4096 + h*65536}")
    def set_soff_K(b):
        for j in range(4): p(f"s_mov_b32 s{SOFF+j}, {(j>>1)*128 + (j&1)*16384 + b*256}")
    def issue(j, regs=DC):
        p(f"s_add_u32 m0, s{RB}, {j*4096}")
        for g in range(4):
            p(f"buffer_load_dwordx4 v{regs+g}, s[{SRD_W}:{SRD_W+3}], s{SOFF+j} offen offset:{g*1024} lds")
    set_soff_T(0)
    for j in range(4): issue(j, DT)
    stamp(13)
    p(f"""v_lshrrev_b32 v{GT+3}, 1, v{GT}
    v_xor_b32 v{GT+3}, v{GT+3}, v{GT+2}
    s_lshl_b32 s{T0}, s{W}, 15
    v_lshlrev_b32 v{GT+4}, 9, v{GT}
    v_add_u32 v{GT+4}, s{T0}, v{GT+4}
    v_lshl_add_u32 v{DK}, v{GT+3}, 4, v{GT+4}
    v_xor_b32 v{GT+3}, 4, v{GT+3}
    v_lshl_add_u32 v{DK+1}, v{GT+3}, 4, v{GT+4}
    v_add_u32 v{DK+2}, {2*3072}, v{DK}
    v_add_u32 v{DK+3}, {3*3072}, v{DK+1}
    v_add_u32 v{DK+1}, {3072}, v{DK+1}""")
    for g in range(4): p(f"v_mov_b32 v{DC+g}, v{DT+g}")
    p(f"""v_and_b32 v{J}, 15, v{LANE}
    v_lshrrev_b32 v{G4}, 4, v{LANE}""")
    p(f"""v_bfe_u32 v{GT}, v{LANE}, 2, 2
    v_and_b32 v{GT+2}, 3, v{LANE}
    v_lshlrev_b32 v{GT+3}, 10, v{G4}
    v_lshl_add_u32 v{GT+3}, v{GT}, 7, v{GT+3}
    v_lshl_add_u32 v{GT+3}, v{GT+2}, 3, v{GT+3}
    v_add_u32 v{GT+3}, s{RB}, v{GT+3}
    v_and_b32 v{GT+4}, 1, v{G4}
    v_lshlrev_b32 v{GT+4}, 1, v{GT+4}
    v_lshrrev_b32 v{GT}, 1, v{GT}
    v_or_b32 v{GT+4}, v{GT+4}, v{GT}""")
    for t in range(4):
        p(f"""v_xor_b32 v{GT}, {t}, v{GT+4}
        v_lshl_add_u32 v{VT+t}, v{GT}, 5, v{GT+3}""")
    p(f"""v_lshrrev_b32 v{GT}, 3, v{J}
    v_and_b32 v{GT+2}, 7, v{J}
    v_lshlrev_b32 v{GT}, 10, v{GT}
    v_lshl_add_u32 v{GT}, v{GT+2}, 7, v{GT}
    v_add_u32 v{GT}, s{RB}, v{GT}
    v_lshrrev_b32 v{GT+3}, 1, v{J}
    v_xor_b32 v{GT+3}, v{GT+3}, v{G4}
    v_lshl_add_u32 v{VK}, v{GT+3}, 4, v{GT}
    v_xor_b32 v{GT+3}, 4, v{GT+3}
    v_lshl_add_u32 v{VK+1}, v{GT+3}, 4, v{GT}""")
    p(f"""v_lshlrev_b32 v{GT}, 9, v{J}
    v_add_u32 v{GT}, {XB}, v{GT}
    v_lshlrev_b32 v{GT+3}, 2, v{G4}
    v_xor_b32 v{GT+3}, v{GT+3}, v{J}""")
    for r in range(4):
        p(f"""v_xor_b32 v{GT+4}, {r}, v{GT+3}
        v_lshl_add_u32 v{VB+r}, v{GT+4}, 4, v{GT}""")
    p(f"""v_lshlrev_b32 v{GT+3}, 4, v{J}
    v_lshl_add_u32 v{VF01}, v{G4}, 8, v{GT+3}
    v_add_u32 v{VF01}, {YB}, v{VF01}
    v_lshlrev_b32 v{GT+3}, 4, v{GT+2}
    v_lshl_add_u32 v{VF2}, v{G4}, 7, v{GT+3}
    v_add_u32 v{VF2}, {YB+2048}, v{VF2}""")
    p(f"""v_lshrrev_b32 v{GT+4}, 1, v{G4}
    v_and_b32 v{GT+5}, 1, v{G4}
    v_lshlrev_b32 v{GT+5}, 3, v{GT+5}
    s_mul_i32 s{T0}, s{W}, 5120
    s_add_u32 s{T0}, s{T0}, {YB}
    v_lshl_add_u32 v{GT+6}, v{J}, 4, v{GT+5}
    v_lshl_add_u32 v{GT+6}, v{GT+4}, 8, v{GT+6}
    v_add_u32 v{VQ01}, s{T0}, v{GT+6}
    v_add_u32 v{GT+6}, v{GT+3}, v{GT+5}
    v_lshl_add_u32 v{GT+6}, v{GT+4}, 7, v{GT+6}
    s_add_u32 s{T0}, s{T0}, 2048
    v_add_u32 v{VQ2}, s{T0}, v{GT+6}""")
    p(f"""s_lshl_b32 s{T0}, s{W}, 7
    v_add_u32 v{GT}, s{T0}, v{GT}
    v_add_u32 v{GT}, v{GT}, v{GT+5}
    s_lshr_b32 s{T0}, s{W}, 1
    s_lshl_b32 s{T0}, s{T0}, 7
    s_add_u32 s{T0}, s{T0}, s{RB}
    v_lshl_add_u32 v{GT+6}, v{J}, 7, v{GT+5}
    v_add_u32 v{GT+6}, s{T0}, v{GT+6}
    v_xor_b32 v{GT+4}, v{GT+4}, v{GT+2}""")
    for t in range(4):
        p(f"""v_xor_b32 v{GT+3}, {2*t}, v{GT+4}
        v_lshl_add_u32 v{VQK+t}, v{GT+3}, 4, v{GT}
        v_lshl_add_u32 v{VOUT+t}, v{GT+3}, 4, v{GT+6}""")
    for i in range(48): p(f"v_mov_b32 v{ACC1+i}, 0")
    for i in range(48): p(f"v_mov_b32 v{ACC2+i}, 0")
    stamp(14)
    p(f"""s_waitcnt lgkmcnt(0)
    s_barrier""")
    stamp(15)
    p(f"""s_cmp_ge_u32 s2, {NPROD}
    s_cbranch_scc1 L_G_nobin
    s_waitcnt vmcnt(22)""")
    stamp(16)
    p(f"""s_call_b64 s[{LINK}:{LINK+1}], L_bin""")
    stamp(17)
    p.label("L_G_nobin")
    if opt.stamps:
        p("s_waitcnt vmcnt(21)")
        stamp(18)
    p("s_waitcnt vmcnt(16)")
    signal(S_X)
    stamp(1)
    semwait(S_X, 4, GT)
    stamp(2)

    def acc(base, t, T): return base + (t*3 + T)*4
    def mfmas(base, A, B):
        for t in range(4):
            for T in range(3):
                a = acc(base, t, T)
                p(f"v_mfma_f32_16x16x32_bf16 {v(a,4)}, {v(A+4*t,4)}, {v(B+4*T,4)}, {v(a,4)}")
    def read_T(j, A):
        for t in range(4):
            p(f"ds_read_b64_tr_b16 {v(A+4*t,2)}, v{VT+t} offset:{j*4096}")
            p(f"ds_read_b64_tr_b16 {v(A+4*t+2,2)}, v{VT+t} offset:{j*4096+512}")
    def read_Bx(r, B):
        for T in range(3): p(f"ds_read_b128 {v(B+4*T,4)}, v{VB+r} offset:{T*8192}")
    def read_Bf(r, B):
        p(f"ds_read_b128 {v(B,4)}, v{VF01} offset:{r*2560}")
        p(f"ds_read_b128 {v(B+4,4)}, v{VF01} offset:{r*2560+1024}")
        p(f"ds_read_b128 {v(B+8,4)}, v{VF2} offset:{r*2560}")
    sets = [(PA, PB), (QA, QB)]
    def bodyT(readB, base, last_cond=False):
        def W(n, nlast):
            p(f"s_waitcnt vmcnt({n})")
            if last_cond and nlast != n:
                L = newl("w")
                p(f"""s_cbranch_scc0 {L}
                s_waitcnt vmcnt({nlast})""")
                p.label(L)
        def I(j):
            if last_cond:
                L = newl("i")
                p(f"s_cbranch_scc1 {L}")
                issue(j)
                p(f"s_cmp_eq_u32 s{IT}, 3")
                p.label(L)
            else:
                issue(j)
        if last_cond: p(f"s_cmp_eq_u32 s{IT}, 3")
        W(12, 12); read_T(0, PA); readB(0, PB)
        W(8, 8); read_T(1, QA); readB(1, QB)
        p("s_waitcnt lgkmcnt(11)"); I(0); mfmas(base, PA, PB)
        W(8, 4); read_T(2, PA); readB(2, PB)
        p("s_waitcnt lgkmcnt(11)"); I(1); mfmas(base, QA, QB)
        W(8, 0); read_T(3, QA); readB(3, QB)
        p("s_waitcnt lgkmcnt(11)"); I(2); mfmas(base, PA, PB)
        p("s_waitcnt lgkmcnt(0)"); I(3); mfmas(base, QA, QB)

    def read_K(pi, kk, A):
        for t in range(4):
            p(f"ds_read_b128 {v(A+4*t,4)}, v{VK+kk} offset:{(2*pi + (t>>1))*4096 + (t&1)*2048}")
    def bodyK(base):
        p("s_waitcnt vmcnt(8)")
        read_K(0, 0, PA); read_Bf(0, PB)
        read_K(0, 1, QA); read_Bf(1, QB)
        p("s_waitcnt lgkmcnt(7)"); mfmas(base, PA, PB)
        p("s_waitcnt lgkmcnt(0)"); issue(0); issue(1)
        p("s_waitcnt vmcnt(8)")
        read_K(1, 0, PA); read_Bf(2, PB)
        mfmas(base, QA, QB)
        read_K(1, 1, QA); read_Bf(3, QB)
        p("s_waitcnt lgkmcnt(7)"); mfmas(base, PA, PB)
        p("s_waitcnt lgkmcnt(0)"); issue(2); issue(3)
        mfmas(base, QA, QB)

    def cvt_write(base, addr_of, mask_T2):
        k = 0
        for T in range(3):
            if T == 2 and mask_T2: p("s_mov_b32 exec_lo, 0x00ff00ff\ns_mov_b32 exec_hi, 0x00ff00ff")
            for t in range(4):
                a = acc(base, t, T); d = GT + 2*(k % 4); k += 1
                p(f"v_cvt_pk_bf16_f32 v{d}, v{a}, v{a+1}")
                p(f"v_cvt_pk_bf16_f32 v{d+1}, v{a+2}, v{a+3}")
                r, im = addr_of(t, T)
                p(f"ds_write_b64 v{r}, {v(d,2)} offset:{im}")
            if T == 2 and mask_T2: p("s_mov_b64 exec, -1")

    set_soff_T(1)
    p(f"s_mov_b32 s{IT}, 0")
    p.label("L_g1")
    bodyT(read_Bx, ACC1)
    p(f"""s_cmp_lg_u32 s{IT}, 0
    s_cbranch_scc1 L_g1_done
    s_mov_b32 s{IT}, 1
    s_mov_b32 s{SRD_W}, s20
    s_mov_b32 s{SRD_W+1}, s21""")
    set_soff_K(0)
    for g in range(4): p(f"v_mov_b32 v{DC+g}, v{DK+g}")
    for r in range(4): p(f"v_add_u32 v{VB+r}, 256, v{VB+r}")
    p("s_branch L_g1")
    p.label("L_g1_done")
    stamp(3)
    cvt_write(ACC1, lambda t, T: (VQ01, (t>>1)*2560 + (t&1)*512 + T*1024) if T < 2 else (VQ2, (t>>1)*2560 + (t&1)*256), True)
    signal(S_Q)
    for i in range(48): p(f"v_mov_b32 v{ACC1+i}, 0")
    set_soff_K(1)
    p(f"s_mov_b32 s{IT}, 0")
    semwait(S_Q, 4, GT)
    stamp(4)
    p.label("L_g2")
    bodyK(ACC2)
    p(f"""s_cmp_lg_u32 s{IT}, 0
    s_cbranch_scc1 L_g2_done
    s_mov_b32 s{IT}, 1
    s_mov_b32 s{SRD_W}, s22
    s_mov_b32 s{SRD_W+1}, s23""")
    set_soff_T(0)
    for g in range(4): p(f"v_mov_b32 v{DC+g}, v{DT+g}")
    p(f"""v_add_u32 v{VF01}, 10240, v{VF01}
    v_add_u32 v{VF2}, 10240, v{VF2}
    s_branch L_g2""")
    p.label("L_g2_done")
    stamp(5)
    cvt_write(ACC2, lambda t, T: (VQK+t, T*8192), True)
    signal(S_QK)
    p(f"""v_subrev_u32 v{VF01}, 10240, v{VF01}
    v_subrev_u32 v{VF2}, 10240, v{VF2}""")
    set_soff_T(1)
    p(f"s_mov_b32 s{IT}, 0")
    semwait(S_AA, 4, GT)
    stamp(6)
    p.label("L_g3")
    bodyT(read_Bf, ACC1, last_cond=True)
    p(f"""s_cbranch_scc1 L_g3_done
    s_add_u32 s{IT}, s{IT}, 1
    s_cmp_eq_u32 s{IT}, 2
    s_cbranch_scc1 L_g3_mid
    v_add_u32 v{VF01}, 10240, v{VF01}
    v_add_u32 v{VF2}, 10240, v{VF2}
    s_cmp_eq_u32 s{IT}, 3
    s_cbranch_scc1 L_g3
    s_mov_b32 s{SRD_W}, s16
    s_mov_b32 s{SRD_W+1}, s17""")
    set_soff_T(0)
    p("s_branch L_g3")
    p.label("L_g3_mid")
    p(f"""v_subrev_u32 v{VF01}, {10240 + YB - XB}, v{VF01}
    v_subrev_u32 v{VF2}, {10240 + YB - XB}, v{VF2}""")
    set_soff_T(1)
    stamp(7)
    semwait(S_AL, 4, GT)
    stamp(8)
    p("s_branch L_g3")
    p.label("L_g3_done")
    stamp(9)
    cvt_write(ACC1, lambda t, T: (VOUT+t, T*2048), False)
    p("s_branch L_final")

    p.label("L_bin")
    p(f"""s_movk_i32 s{T0}, -40
    s_mov_b32 s{T1}, {IMG}
    s_mov_b32 s{T2}, {EMPTY + opt.slot_cap}
    v_lshl_add_u32 v{BT}, s{WV}, 6, v{LANE}
    v_cmp_gt_u32 vcc, 452, v{BT}
    s_mov_b64 s[96:97], vcc""")
    for i in range(5):
        p(f"""v_mul_u32_u24 v{BB+i}, 52429, v{BD+i}
        v_lshrrev_b32 v{BB+i}, 21, v{BB+i}
        v_mad_i32_i24 v{BD+i}, v{BB+i}, s{T0}, v{BD+i}
        v_mul_u32_u24 v{BT}, 26, v{BD+i}
        v_lshrrev_b32 v{BT}, 8, v{BT}
        v_mad_u32_u24 v{BD+i}, v{BT}, 6, v{BD+i}
        v_and_b32 v{BT}, 31, v{BB+i}
        v_lshl_add_u32 v{BR+i}, v{BB+i}, 7, s{T1}
        v_lshl_add_u32 v{BH+i}, v{BT}, 2, v{BR+i}""")
        if i == 4: p("s_mov_b64 exec, s[96:97]")
        p(f"ds_add_rtn_u32 v{BH+i}, v{BH+i}, v{ONE}")
        p(f"v_lshl_or_b32 v{BS+i}, v{BD+i}, 14, v{BS+i}")
    p("s_mov_b64 exec, -1")
    for i in range(5):
        p(f"""s_waitcnt lgkmcnt(4)
        v_add3_u32 v{BT}, v{BB+i}, v{BH+i}, 1
        v_and_b32 v{BT}, 31, v{BT}
        v_lshl_add_u32 v{BT}, v{BT}, 2, v{BR+i}
        v_cmp_gt_u32 vcc, s{T2}, v{BH+i}""")
        if i == 4: p("s_and_b64 exec, vcc, s[96:97]")
        else: p("s_mov_b64 exec, vcc")
        p(f"""ds_write_b32 v{BT}, v{BS+i}
        s_mov_b64 exec, -1""")
    p(f"""s_waitcnt lgkmcnt(0)
    s_barrier
    s_setpc_b64 s[{LINK}:{LINK+1}]""")

    CG16, M0, M1, M2, QKA, FW, DISD, LRD, SRD_ = 4, 5, 6, 7, 8, 11, 12, 13, 14
    AD, IDX, S0, S1, P0, P1, EN, DV = 16, 24, 28, 32, 36, 40, 44, 52
    AT = 62
    ACC = 64
    H = [128, 160, 192, 224]
    SRD_E, SRD_DIS, SRD_WS = 52, 56, 60
    TAGP, TAGC, RHO, MODE, SEL0, SEL1, TL, TR = 64, 65, 66, 67, 68, 69, 70, 71
    MK = 72
    CDIS, CCNT, CSIMG, C512 = 88, 89, 98, 99
    p.label("L_A")
    p(f"""global_load_dword v15, v{ZERO}, s[28:29] sc1
    s_mov_b32 s{SRD_E}, s10
    s_mov_b32 s{SRD_E+1}, s11
    s_mov_b32 s{SRD_E+2}, 160000
    s_mov_b32 s{SRD_E+3}, 0x20000
    s_mul_i32 s{T0}, s2, 640
    s_mul_i32 s{T1}, s{W}, 160
    s_add_u32 s{T0}, s{T0}, s{T1}
    v_lshrrev_b32 v{AT}, 4, v{LANE}
    v_lshlrev_b32 v{AD}, 5, v{AT}
    v_lshlrev_b32 v{AD+1}, 3, v{AT}
    buffer_load_dwordx4 {v(EN,4)}, v{AD}, s[{SRD_E}:{SRD_E+3}], s{T0} offen
    buffer_load_dwordx4 {v(EN+4,4)}, v{AD}, s[{SRD_E}:{SRD_E+3}], s{T0} offen offset:16
    buffer_load_dwordx2 {v(DV,2)}, v{AD+1}, s[{SRD_E}:{SRD_E+3}], s{T0} offen offset:128""")
    srd(SRD_DIS, 14, 20000)
    p(f"""s_add_u32 s{SRD_WS}, s28, {SLOT0}
    s_addc_u32 s{SRD_WS+1}, s29, 0
    s_mov_b32 s{SRD_WS+2}, {256*8192}
    s_mov_b32 s{SRD_WS+3}, 0x20000
    s_mov_b32 s{SEL0}, 0x05040100
    s_mov_b32 s{SEL1}, 0x07060302
    s_mov_b32 s{CDIS}, {DIS}
    s_mov_b32 s{CCNT}, {SEM + CNT}
    s_mov_b32 s{CSIMG}, {SIMG}
    s_movk_i32 s{C512}, 512
    s_mov_b32 s{MODE}, 0
    s_mov_b32 s{TL}, 0
    s_mov_b32 s{TR}, 0""")
    p(f"""v_and_b32 v{AT+1}, 15, v{LANE}
    v_lshlrev_b32 v{CG16}, 4, v{AT+1}
    v_lshlrev_b32 v{P0}, 1, v{AT}
    v_cmp_eq_u32 vcc, v{P0}, v{AT+1}
    v_add_u32 v{P0+1}, 1, v{P0}
    v_cmp_eq_u32 s[72:73], v{P0+1}, v{AT+1}
    v_lshrrev_b32 v{P0+2}, 1, v{AT}
    v_add_u32 v{P0+2}, 8, v{P0+2}
    v_cmp_eq_u32 s[74:75], v{P0+2}, v{AT+1}
    v_cndmask_b32_e64 v{M0}, 0, -1, vcc
    v_cndmask_b32_e64 v{M1}, 0, -1, s[72:73]
    v_cndmask_b32_e64 v{M2}, 0, -1, s[74:75]
    s_mul_i32 s{T0}, s{W}, 10""")
    for e in range(3):
        p(f"""v_add_u32 v{P1}, s{T0}, v{P0+e}
        v_and_b32 v{P1+1}, 7, v{P1}
        v_xor_b32 v{P1+1}, v{P1+1}, v{AT+1}
        v_lshlrev_b32 v{P1+1}, 4, v{P1+1}
        v_lshl_add_u32 v{P1+1}, v{P1}, 9, v{P1+1}
        v_add_u32 v{QKA+e}, {XB}, v{P1+1}""")
    p(f"""v_add_u32 v{P1}, s{T0}, v{AT+1}
    v_and_b32 v{P1+1}, 15, v{P1}
    v_lshrrev_b32 v{P1+2}, 4, v{P1}
    v_lshlrev_b32 v{P1+2}, 10, v{P1+2}
    v_lshl_add_u32 v{P1+2}, v{P1+1}, 4, v{P1+2}
    v_lshl_add_u32 v{P1+3}, v{AT}, 8, v{P1+2}
    v_lshl_add_u32 v{P1+2}, v{AT}, 7, v{P1+2}
    v_cmp_gt_u32 vcc, 32, v{P1}
    s_mul_i32 s{T1}, s2, 40
    v_add_u32 v{DISD}, s{T1}, v{P1}
    v_cndmask_b32_e64 v{FW}, v{P1+2}, v{P1+3}, vcc
    v_add_u32 v{FW}, {YB}, v{FW}
    v_lshl_add_u32 v{DISD}, v{DISD}, 1, s{CDIS}""")
    stamp(14)
    p(f"""s_waitcnt lgkmcnt(0)
    s_barrier""")
    stamp(15)
    p(f"""s_cmp_ge_u32 s2, {NPROD}
    s_cbranch_scc1 L_A_nobin
    s_waitcnt vmcnt(4)""")
    stamp(16)
    p(f"""s_call_b64 s[{LINK}:{LINK+1}], L_bin""")
    stamp(17)
    p(f"""v_lshl_add_u32 v{P0}, s{W}, 6, v{LANE}
    v_lshlrev_b32 v{P0+1}, 4, v{P0}
    v_add_u32 v{P0+1}, {IMG}, v{P0+1}""")
    for k in range(8): p(f"ds_read_b128 {v(ACC+4*k,4)}, v{P0+1} offset:{k*4096}")
    p(f"""v_lshrrev_b32 v{P0+2}, 3, v{P0}
    v_and_b32 v{P0+3}, 7, v{P0}
    v_lshlrev_b32 v{P0+2}, 13, v{P0+2}
    v_lshlrev_b32 v{P0+3}, 4, v{P0+3}
    s_lshl_b32 s{T0}, s2, 7
    v_add3_u32 v{P0+2}, v{P0+2}, v{P0+3}, s{T0}
    s_waitcnt vmcnt(0)
    v_readfirstlane_b32 s{TAGP}, v15
    s_lshr_b32 s{TAGP}, s{TAGP}, 20
    s_add_u32 s{TAGP}, s{TAGP}, {TAGINC}
    s_lshl_b32 s{TAGP}, s{TAGP}, 20
    s_mov_b32 s{T0}, 0""")
    for k in range(8):
        p(f"s_waitcnt lgkmcnt({7-k})")
        for d in range(4): p(f"v_or_b32 v{ACC+4*k+d}, s{TAGP}, v{ACC+4*k+d}")
        p(f"buffer_store_dwordx4 {v(ACC+4*k,4)}, v{P0+2}, s[{SRD_WS}:{SRD_WS+3}], s{T0} offen sc1")
        if k < 7: p(f"s_add_u32 s{T0}, s{T0}, {32*8192}")
    signal(S_CPY)
    stamp(1)
    p("s_branch L_A_rows")
    p.label("L_A_nobin")
    p(f"""s_waitcnt vmcnt(0)
    v_readfirstlane_b32 s{TAGP}, v15
    s_lshr_b32 s{TAGP}, s{TAGP}, 20
    s_add_u32 s{TAGP}, s{TAGP}, {TAGINC}
    s_lshl_b32 s{TAGP}, s{TAGP}, 20""")
    p.label("L_A_rows")
    stamp(18)
    for i in range(8):
        p(f"""v_lshl_add_u32 v{AD+i}, v{EN+i}, 9, v{CG16}
        buffer_load_dwordx4 {v(H[0]+4*i,4)}, v{AD+i}, s[{SRD_X}:{SRD_X+3}], 0 offen
        buffer_load_dwordx4 {v(H[1]+4*i,4)}, v{AD+i}, s[{SRD_X}:{SRD_X+3}], 0 offen offset:256""")
    for i in range(2):
        p(f"""v_lshl_add_u32 v{IDX+i}, v{DV+i}, 9, v{CG16}
        buffer_load_dwordx4 {v(H[2]+8*i,4)}, v{IDX+i}, s[{SRD_X}:{SRD_X+3}], 0 offen
        buffer_load_dwordx4 {v(H[2]+8*i+4,4)}, v{IDX+i}, s[{SRD_X}:{SRD_X+3}], 0 offen offset:256""")
    p(f"global_load_dword v15, v{ZERO}, s[26:27] sc1")
    stamp(2)
    p(f"""s_cmp_ge_u32 s2, {NPROD}
    s_cbranch_scc1 L_A_nocpy""")
    semwait(S_CPY, 4, AT)
    p.label("L_A_nocpy")
    p(f"""v_lshlrev_b32 v{P0}, 4, v{LANE}
    s_mul_i32 s{T0}, s{W}, 5120
    s_add_u32 s{T1}, s{T0}, {DIS}""")
    for k in range(5):
        p(f"""s_add_u32 m0, s{T1}, {k*1024}
        s_nop 0
        buffer_load_dwordx4 v{P0}, s[{SRD_DIS}:{SRD_DIS+3}], s{T0} offen lds""")
        if k < 4: p(f"s_add_u32 s{T0}, s{T0}, 1024")
    p(f"""v_lshrrev_b32 v{AT}, 4, v{LANE}
    s_lshl_b32 s{T0}, s{W}, 8
    s_add_u32 s{T0}, s{T0}, {SIMG}
    v_lshl_add_u32 v{SRD_}, v{AT}, 10, v{CG16}
    v_add_u32 v{SRD_}, s{T0}, v{SRD_}
    v_or_b32 v{LRD}, 240, v{SRD_}""")
    p(f"s_call_b64 s[{LINK}:{LINK+1}], L_init")
    p(f"""v_mov_b32 v{P1+1}, 0
    v_mov_b32 v{P1+3}, 0
    v_mov_b32 v{P0+1}, 0
    v_mov_b32 v{P0+3}, 0
    v_mov_b32 v{S1+1}, 0
    s_waitcnt vmcnt(0)
    v_readfirstlane_b32 s{T0}, v15""")
    signal(S_I)
    p(f"""s_bitcmp1_b32 s{T0}, 16
    s_cbranch_scc0 L_A_tagok
    s_add_u32 s{T0}, s{T0}, {TAGINC}
    s_lshl_b32 s{TAGP}, s{T0}, 20""")
    p.label("L_A_tagok")
    p(f"""s_lshl_b32 s{T0}, s{W}, 11
    s_lshl_b32 s{T1}, s2, 13
    s_add_u32 s{T0}, s{T0}, s{T1}
    v_lshlrev_b32 v15, 4, v{LANE}
    v_add_u32 v15, s{T0}, v15""")
    stamp(3)
    semwait(S_QK, 4, AT)
    stamp(4)
    p(f"""buffer_load_dwordx4 {v(EN,4)}, v15, s[{SRD_WS}:{SRD_WS+3}], 0 offen sc1
    buffer_load_dwordx4 {v(EN+4,4)}, v15, s[{SRD_WS}:{SRD_WS+3}], 0 offen offset:1024 sc1""")
    QK0 = H[3]
    for e in range(3):
        for h in range(2):
            p(f"ds_read_b128 {v(QK0+8*e+4*h,4)}, v{QKA+e} offset:{h*256}")
    def raw(i, h, d): return (H[h] + 4*i + d) if i < 8 else (H[2] + 8*(i-8) + 4*h + d)
    for e, slots in ((0, range(0, 4)), (1, range(4, 8)), (2, range(8, 10))):
        p(f"s_waitcnt lgkmcnt({4-2*e})")
        for h in range(2):
            for d in range(4):
                for i in slots:
                    q = QK0 + 8*e + 4*h + d
                    if h == 0 and d == 0: p(f"v_dot2_f32_bf16 v{DV+i}, v{raw(i,h,d)}, v{q}, 0")
                    else: p(f"v_dot2c_f32_bf16 v{DV+i}, v{raw(i,h,d)}, v{q}")
    for rot in (8, 4, 2, 1):
        for i in range(10):
            p(f"v_add_f32_dpp v{DV+i}, v{DV+i}, v{DV+i} row_ror:{rot} row_mask:0xf bank_mask:0xf")
    p(f"s_mov_b32 s{T0}, 0x3db8aa3b")
    for i in range(10): p(f"v_mul_f32 v{DV+i}, s{T0}, v{DV+i}")
    for i in range(10): p(f"v_exp_f32 v{DV+i}, v{DV+i}")
    p(f"""s_mov_b32 s{T0}, 0x3089705f
    v_add_f32 v{AT}, v{DV+8}, v{DV+9}
    v_add_f32 v{S0}, v{DV}, v{DV+1}
    v_add_f32 v{S0+1}, v{DV+2}, v{DV+3}
    v_mov_b32 v{AT+1}, v{AT}
    v_add_f32 v{S0+2}, v{DV+4}, v{DV+5}
    v_add_f32 v{S0+3}, v{DV+6}, v{DV+7}
    v_permlane16_swap_b32 v{AT}, v{AT+1}
    v_add_f32 v{S0}, v{S0}, v{S0+1}""")
    p(f"""v_add_f32 v{S0+2}, v{S0+2}, v{S0+3}
    v_add_f32 v{AT}, v{AT}, v{AT+1}
    v_add_f32 v{S0}, s{T0}, v{S0}
    v_add_f32 v{S0+2}, s{T0}, v{S0+2}
    v_add_f32 v{AT}, s{T0}, v{AT}
    v_rcp_f32 v{S0}, v{S0}
    v_rcp_f32 v{S0+2}, v{S0+2}
    v_rcp_f32 v{AT}, v{AT}""")
    for i in range(10):
        r = S0 if i < 4 else (S0+2 if i < 8 else AT)
        p(f"v_mul_f32 v{DV+i}, v{r}, v{DV+i}")
    for k in range(4):
        p(f"v_cvt_pk_bf16_f32 v{S0+k}, v{DV+2*k}, v{DV+2*k+1}")
    p(f"v_cvt_pk_bf16_f32 v{S1}, v{DV+8}, v{DV+9}")
    for k in range(4): p(f"v_and_b32 v{S0+k}, v{M0 if k < 2 else M1}, v{S0+k}")
    p(f"v_and_b32 v{S1}, v{M2}, v{S1}")
    stamp(5)
    pp = [P0, P0+2, P1, P1+2]
    def perm1(n):
        h, t = n >> 3, n & 7
        p(f"v_perm_b32 v{pp[n % 4]}, v{raw(9,h,t>>1)}, v{raw(8,h,t>>1)}, s{SEL1 if t&1 else SEL0}")
    perm1(0); perm1(1)
    for n in range(16):
        if n + 2 < 16: perm1(n+2)
        a = ACC + 4*n
        p(f"v_mfma_f32_16x16x16_bf16 {v(a,4)}, {v(pp[n % 4],2)}, {v(S1,2)}, 0")
    p(f"""s_mov_b32 s{RHO}, 0
    s_call_b64 s[{LINK}:{LINK+1}], L_agg
    s_call_b64 s[{LINK}:{LINK+1}], L_wout""")
    signal(S_AA)
    stamp(6)
    p(f"v_add_u32 v{FW}, {(XB - YB) & 0xffffffff}, v{FW}")
    p.label("L_poll")
    p("s_waitcnt vmcnt(0)")
    for k in range(8): p(f"v_xor_b32 v{EN+k}, s{TAGP}, v{EN+k}")
    p(f"""v_max3_u32 v{AT}, v{EN}, v{EN+1}, v{EN+2}
    v_max3_u32 v{AT+1}, v{EN+3}, v{EN+4}, v{EN+5}
    v_max3_u32 v{AT}, v{AT}, v{EN+6}, v{EN+7}
    v_max_u32 v{AT}, v{AT}, v{AT+1}
    v_cmp_lt_u32 vcc, 0xfffff, v{AT}
    s_cmp_eq_u64 vcc, 0
    s_cbranch_scc1 L_got
    s_add_u32 s93, s93, 16
    s_cmp_ge_u32 s93, {SPIN_MAX}
    s_cbranch_scc1 L_end
    s_sleep 1
    buffer_load_dwordx4 {v(EN,4)}, v15, s[{SRD_WS}:{SRD_WS+3}], 0 offen sc1
    buffer_load_dwordx4 {v(EN+4,4)}, v15, s[{SRD_WS}:{SRD_WS+3}], 0 offen offset:1024 sc1
    s_branch L_poll""")
    p.label("L_got")
    stamp(7)
    semwait(S_I, 4, AT+1)
    p(f"""ds_read_u16 v{DISD}, v{DISD}
    v_mov_b32 v{DV+9}, 0
    v_cmp_lt_u32 vcc, {EMPTY + opt.slot_cap}, v{AT}""")
    if opt.force_slow: p("s_mov_b64 vcc, -1")
    p(f"""s_cmp_lg_u64 vcc, 0
    s_cselect_b32 s{T2}, 0x10000, 0""")
    p.label("L_fill")
    FS, F0, FL, FP, FWt = H[2], H[2]+8, H[2]+16, H[2]+24, H[3]
    p(f"s_mov_b32 s{T0}, {EMPTY}")
    for k in range(8):
        p(f"""v_and_b32 v{FS+k}, 0x3fff, v{EN+k}
        v_cmp_gt_u32 s[{MK+2*k}:{MK+2*k+1}], s{T0}, v{EN+k}
        v_lshl_add_u32 v{FWt+k}, v{FS+k}, 1, s{CDIS}
        v_lshrrev_b32 v{FP+k}, 18, v{EN+k}
        v_lshl_add_u32 v{FP+k}, v{FP+k}, 2, s{CCNT}
        v_lshrrev_b32 v{F0+k}, 10, v{EN+k}
        s_mov_b64 exec, s[{MK+2*k}:{MK+2*k+1}]
        ds_read_u16 v{FWt+k}, v{FWt+k}
        ds_add_rtn_u32 v{FP+k}, v{FP+k}, v{ONE}
        s_mov_b64 exec, -1
        v_and_b32 v{F0+k}, 0x3f0, v{F0+k}
        v_or_b32 v{FL+k}, 240, v{F0+k}""")
    for k in range(8):
        p(f"""s_mov_b64 exec, s[{MK+2*k}:{MK+2*k+1}]
        s_waitcnt lgkmcnt(14)
        v_max_u32 v{DV+9}, v{DV+9}, v{FP+k}
        v_min_u32 v{FP+k}, 255, v{FP+k}
        v_lshlrev_b32 v{AT}, 1, v{FP+k}
        v_lshrrev_b32 v{FP+k}, 3, v{FP+k}
        v_and_or_b32 v{AT}, v{AT}, 14, s{CSIMG}
        v_lshl_add_u32 v{AT}, v{FP+k}, 10, v{AT}
        v_add_u32 v{F0+k}, v{F0+k}, v{AT}
        v_add_u32 v{FL+k}, v{FL+k}, v{AT}
        ds_write_b16 v{F0+k}, v{FWt+k}
        ds_write_b16 v{FL+k}, v{FS+k}""")
    p(f"""s_mov_b64 exec, -1
    v_cmp_lt_u32 vcc, 255, v{DV+9}
    s_or_b32 s{T1}, s{T2}, 0x10000
    s_cmp_lg_u64 vcc, 0
    s_cselect_b32 s{T2}, s{T1}, s{T2}
    s_add_u32 s{T2}, s{T2}, 1
    v_mov_b32 v{AT}, s{T2}
    s_add_u32 s{TL}, s{TL}, 4""")
    signal(S_L, AT)
    semwait(S_L, f"s{TL}", AT, mask=0xffff, keep=T1)
    p(f"""s_lshr_b32 s{T1}, s{T1}, 16
    s_cmp_eq_u32 s{MODE}, 0
    s_cselect_b32 s{T1}, s{T1}, 0
    s_cmp_lg_u32 s{T1}, 0
    s_cbranch_scc1 L_slow_enter
    s_lshl_b32 s{T0}, s{W}, 2
    v_mov_b32 v{AT}, s{T0}
    v_add_u32 v{AT}, s{CCNT}, v{AT}
    ds_read_b32 v{AT}, v{AT}
    ds_read_b128 {v(IDX,4)}, v{LRD}
    ds_read_b128 {v(P0,4)}, v{LRD} offset:4096
    ds_read_b128 {v(S0,4)}, v{SRD_}
    ds_read_b128 {v(S1,4)}, v{SRD_} offset:4096
    s_waitcnt lgkmcnt(4)
    v_readfirstlane_b32 s{RHO}, v{AT}
    s_add_u32 s{RHO}, s{RHO}, 31
    s_lshr_b32 s{RHO}, s{RHO}, 5
    s_cmp_eq_u32 s{RHO}, 0
    s_cbranch_scc1 L_round_done
    s_sub_u32 s{RHO}, s{RHO}, 1
    s_waitcnt lgkmcnt(3)""")
    def addrs(src):
        for i in range(8):
            sel = " op_sel:[1,0,0,0]" if i & 1 else ""
            p(f"v_mad_u32_u16 v{AD+i}, v{src + (i>>1)}, s{C512}, v{CG16}{sel}")
    def loads(u, h):
        for i in range(8):
            p(f"buffer_load_dwordx4 {v(H[u]+4*i,4)}, v{AD+i}, s[{SRD_X}:{SRD_X+3}], 0 offen" + (" offset:256" if h else ""))
    addrs(IDX); loads(0, 0); loads(1, 1)
    p(f"""s_cmp_eq_u32 s{RHO}, 0
    s_cbranch_scc1 L_pro_done
    s_waitcnt lgkmcnt(2)""")
    addrs(P0); loads(2, 0); loads(3, 1)
    p.label("L_pro_done")
    p(f"""ds_read_b128 {v(IDX,4)}, v{LRD} offset:8192
    v_add_u32 v{LRD}, {3*4096}, v{LRD}
    v_add_u32 v{SRD_}, {2*4096}, v{SRD_}
    s_cmp_lg_u32 s{MODE}, 0
    s_cbranch_scc1 L_nozero""")
    for i in range(64): p(f"v_mov_b32 v{ACC+i}, 0")
    p.label("L_nozero")
    stamp(8)
    p(f"s_call_b64 s[{LINK}:{LINK+1}], L_agg")
    p("s_branch L_round_end")
    p.label("L_round_done")
    p(f"""s_waitcnt lgkmcnt(0)
    s_cmp_lg_u32 s{MODE}, 0
    s_cbranch_scc1 L_round_end""")
    for i in range(64): p(f"v_mov_b32 v{ACC+i}, 0")
    p.label("L_round_end")
    p(f"""s_cmp_lg_u32 s{MODE}, 0
    s_cbranch_scc1 L_slow_next""")
    p.label("L_A_tail")
    stamp(9)
    p(f"""s_waitcnt lgkmcnt(0)
    v_lshlrev_b32 v{DISD}, 16, v{DISD}
    s_nop 4""")
    for i in range(32):
        p(f"v_pk_mul_f32 {v(ACC+2*i,2)}, {v(ACC+2*i,2)}, {v(DISD,2)} op_sel_hi:[1,0]")
    p(f"s_call_b64 s[{LINK}:{LINK+1}], L_wout")
    signal(S_AL)
    stamp(10)
    p("s_branch L_final")

    p.label("L_slow_enter")
    for i in range(64): p(f"v_mov_b32 v{ACC+i}, 0")
    srd(SRD_SRC, 6, 640000)
    srd(SRD_DST, 8, 640000)
    p(f"s_mov_b32 s{MODE}, 0")
    p.label("L_slow_next")
    p(f"""s_cmp_eq_u32 s{MODE}, 625
    s_cbranch_scc1 L_A_tail
    s_lshl_b32 s{T0}, s{MODE}, 10
    s_add_u32 s{MODE}, s{MODE}, 1
    v_lshl_add_u32 v{AT}, s{W}, 6, v{LANE}
    v_lshlrev_b32 v{AT}, 2, v{AT}
    buffer_load_dword v{EN}, v{AT}, s[{SRD_SRC}:{SRD_SRC+3}], s{T0} offen
    buffer_load_dword v{EN+1}, v{AT}, s[{SRD_DST}:{SRD_DST+3}], s{T0} offen
    v_lshrrev_b32 v{AT}, 4, v{LANE}
    s_lshl_b32 s{T0}, s{W}, 8
    s_add_u32 s{T0}, s{T0}, {SIMG}
    v_lshl_add_u32 v{SRD_}, v{AT}, 10, v{CG16}
    v_add_u32 v{SRD_}, s{T0}, v{SRD_}
    v_or_b32 v{LRD}, 240, v{SRD_}
    s_waitcnt lgkmcnt(0)
    s_call_b64 s[{LINK}:{LINK+1}], L_init
    s_add_u32 s{TR}, s{TR}, 4""")
    signal(S_R)
    semwait(S_R, f"s{TR}", AT)
    p(f"""s_mul_i32 s{T0}, s2, 40
    s_waitcnt vmcnt(0)
    v_subrev_u32 v{EN+1}, s{T0}, v{EN+1}
    v_cmp_gt_u32 vcc, 40, v{EN+1}
    v_mul_u32_u24 v{AT}, 26, v{EN+1}
    v_lshrrev_b32 v{AT}, 8, v{AT}
    v_mad_u32_u24 v{AT}, v{AT}, 6, v{EN+1}
    v_lshl_or_b32 v{AT}, v{AT}, 14, v{EN}
    v_mov_b32 v{EN+1}, {EMPTY}
    v_cndmask_b32_e64 v{EN}, v{EN+1}, v{AT}, vcc""")
    for k in range(2, 8): p(f"v_mov_b32 v{EN+k}, {EMPTY}")
    p(f"""v_mov_b32 v{DV+9}, 0
    s_mov_b32 s{T2}, 0
    s_branch L_fill""")

    p.label("L_init")
    p(f"""v_and_b32 v{AT}, 15, v{LANE}
    v_cmp_eq_u32 vcc, 15, v{AT}
    s_lshl_b32 s{T0}, s{W}, 2
    s_add_u32 s{T0}, s{T0}, s{CCNT}
    v_mov_b32 v{AT+1}, s{T0}
    v_cndmask_b32_e64 v{S0}, 0, -1, vcc
    v_cndmask_b32_e64 v{S0+1}, 0, -1, vcc
    v_cndmask_b32_e64 v{S0+2}, 0, -1, vcc
    v_cndmask_b32_e64 v{S0+3}, 0, -1, vcc
    ds_write_b32 v{AT+1}, v{ZERO}""")
    for k in range(8): p(f"ds_write_b128 v{SRD_}, {v(S0,4)} offset:{k*4096}")
    p(f"s_setpc_b64 s[{LINK}:{LINK+1}]")

    p.label("L_wout")
    p("""s_nop 7
    s_mov_b32 exec_lo, 0x03ff03ff
    s_mov_b32 exec_hi, 0x03ff03ff""")
    for h in range(2):
        for r in range(4):
            d = P0 if r % 2 == 0 else P1
            for k in range(4):
                p(f"v_cvt_pk_bf16_f32 v{d+k}, v{ACC+(8*h+2*k)*4+r}, v{ACC+(8*h+2*k+1)*4+r}")
            p(f"ds_write_b128 v{FW}, {v(d,4)} offset:{(4*h+r)*2560}")
    p(f"""s_mov_b64 exec, -1
    s_setpc_b64 s[{LINK}:{LINK+1}]""")

    def perms(u, t, P):
        for q in range(4):
            p(f"v_perm_b32 v{P+q}, v{H[u]+4*(2*q+1)+(t>>1)}, v{H[u]+4*(2*q)+(t>>1)}, s{SEL1 if t&1 else SEL0}")
    def CB(u, S):
        h = u & 1
        perms(u, 0, P0)
        for t in range(8):
            if t < 7: perms(u, t+1, P1 if t % 2 == 0 else P0)
            a = ACC + (8*h + t)*4
            p(f"v_mfma_f32_16x16x32_bf16 {v(a,4)}, {v(P0 if t % 2 == 0 else P1,4)}, {v(S,4)}, {v(a,4)}")
    p.label("L_agg")
    for pi in range(2):
        S = S0 if pi == 0 else S1
        L1, L2, L3, L4, L5 = newl("a"), newl("a"), newl("a"), newl("a"), newl("a")
        p(f"""s_cmp_eq_u32 s{RHO}, 0
        s_waitcnt vmcnt(24) lgkmcnt(1)
        s_cbranch_scc0 {L1}
        s_waitcnt vmcnt(8)""")
        p.label(L1)
        CB(2*pi, S)
        p(f"""s_cmp_lt_u32 s{RHO}, 2
        s_cbranch_scc1 {L2}
        s_waitcnt lgkmcnt(0)""")
        addrs(IDX); loads(2*pi, 0)
        p(f"""ds_read_b128 {v(IDX,4)}, v{LRD}
        v_add_u32 v{LRD}, 4096, v{LRD}
        s_waitcnt vmcnt(24)
        s_branch {L3}""")
        p.label(L2)
        p(f"""s_cmp_eq_u32 s{RHO}, 0
        s_waitcnt vmcnt(16)
        s_cbranch_scc0 {L3}
        s_waitcnt vmcnt(0)""")
        p.label(L3)
        CB(2*pi+1, S)
        p(f"""s_cmp_lt_u32 s{RHO}, 2
        s_cbranch_scc1 {L4}""")
        loads(2*pi+1, 1)
        p(f"""ds_read_b128 {v(S,4)}, v{SRD_}
        v_add_u32 v{SRD_}, 4096, v{SRD_}""")
        p.label(L4)
        p(f"""s_cmp_eq_u32 s{RHO}, 0
        s_cbranch_scc1 L_agg_ret
        s_sub_u32 s{RHO}, s{RHO}, 1""")
        if pi == 1: p("s_branch L_agg")
    p.label("L_agg_ret")
    p(f"s_setpc_b64 s[{LINK}:{LINK+1}]")

    p.label("L_final")
    p(f"""v_lshrrev_b32 v4, 5, v{LANE}
    s_lshl_b32 s{T0}, s{WV}, 1
    v_add_u32 v4, s{T0}, v4
    v_and_b32 v5, 31, v{LANE}
    v_lshrrev_b32 v6, 3, v5
    v_xor_b32 v7, v4, v5
    v_and_b32 v7, 7, v7
    v_lshlrev_b32 v7, 4, v7
    v_lshl_add_u32 v7, v4, 7, v7
    v_lshl_add_u32 v7, v6, 14, v7
    v_lshrrev_b32 v6, 1, v6
    v_lshl_add_u32 v7, v6, 7, v7
    v_lshlrev_b32 v5, 4, v5
    v_lshl_add_u32 v5, v4, 9, v5
    s_mul_i32 s{T0}, s2, 20480
    s_add_u32 s{T1}, s{T0}, 8192
    s_add_u32 s{T2}, s{T0}, 16384
    s_waitcnt lgkmcnt(0)
    s_barrier
    ds_read_b128 v[8:11], v7 offset:{RING}
    ds_read_b128 v[12:15], v7 offset:{RING+2048}
    s_cmp_ge_u32 s{WV}, 4
    s_cbranch_scc1 L_fin2
    ds_read_b128 v[16:19], v7 offset:{RING+4096}
    s_waitcnt lgkmcnt(0)
    buffer_store_dwordx4 v[16:19], v5, s[{SRD_OUT}:{SRD_OUT+3}], s{T2} offen""")
    p.label("L_fin2")
    p(f"""s_waitcnt lgkmcnt(0)
    buffer_store_dwordx4 v[8:11], v5, s[{SRD_OUT}:{SRD_OUT+3}], s{T0} offen
    buffer_store_dwordx4 v[12:15], v5, s[{SRD_OUT}:{SRD_OUT+3}], s{T1} offen""")
    stamp(11)
    if opt.stretch and opt.stretch[1] == -2:
        p("s_waitcnt vmcnt(0)")
        stamp(19)
    stamp_out()
    stretch()
    p("s_endpgm")

    p.label("L_upd")
    p(f"""s_cmp_lg_u32 s{WV}, 0
    s_cbranch_scc1 L_end
    s_waitcnt lgkmcnt(0)
    global_load_dword v15, v{ZERO}, s[28:29] sc1
    s_add_u32 s60, s28, {SLOT0 + NWG*8192}
    s_addc_u32 s61, s29, 0
    s_mov_b32 s62, 8192
    s_mov_b32 s63, 0x20000
    v_lshlrev_b32 v4, 4, v{LANE}
    s_movk_i32 s{T1}, 4096
    s_waitcnt vmcnt(0)
    v_readfirstlane_b32 s64, v15
    s_lshr_b32 s64, s64, 20
    s_add_u32 s65, s64, {TAGINC}
    s_lshl_b32 s65, s65, 20""")
    p.label("L_upd_poll")
    for k in range(8):
        p(f"buffer_load_dwordx4 {v(16+4*k,4)}, v4, s[60:63], {'0' if k < 4 else 's%d' % T1} offen offset:{(k&3)*1024} sc1")
    p("s_waitcnt vmcnt(0)")
    for k in range(32): p(f"v_xor_b32 v{16+k}, s65, v{16+k}")
    for k in range(1, 31, 2): p(f"v_max3_u32 v16, v16, v{16+k}, v{17+k}")
    p(f"""v_max_u32 v16, v16, v47
    v_cmp_lt_u32 vcc, 0xfffff, v16
    s_cmp_eq_u64 vcc, 0
    s_cbranch_scc1 L_upd_go
    s_add_u32 s93, s93, 16
    s_cmp_ge_u32 s93, {SPIN_MAX}
    s_cbranch_scc1 L_end
    s_sleep 8
    s_branch L_upd_poll""")
    p.label("L_upd_go")
    p(f"""s_or_b32 s64, s64, 0x10000
    v_mov_b32 v5, s64
    v_mov_b32 v6, s65
    s_mov_b64 exec, 1
    global_store_dword v{ZERO}, v5, s[26:27] sc0 sc1
    s_waitcnt vmcnt(0)
    global_store_dword v{ZERO}, v6, s[28:29] sc0 sc1""")
    p.label("L_end")
    p("s_endpgm")

    a, b = p.finish()
    hdr = open(os.path.join(os.path.dirname(os.path.abspath(__file__)), "header.txt")).read()
    out = hdr + f"; @launch grid=({NWG+1},1,1) block=(512,1,1) lds={LDS_TOTAL}\n"
    out += f""".amdgcn_target "amdgcn-amd-amdhsa--gfx950"
.text
.globl {KNAME}
.p2align 8
.type {KNAME},@function
{KNAME}:
"""
    out += p.text()
    out += f""".section .rodata,"a"
.p2align 6
.amdhsa_kernel {KNAME}
  .amdhsa_next_free_vgpr 256
  .amdhsa_next_free_sgpr 102
  .amdhsa_accum_offset 256
  .amdhsa_group_segment_fixed_size 0
  .amdhsa_kernarg_size 104
  .amdhsa_user_sgpr_count 2
  .amdhsa_user_sgpr_kernarg_segment_ptr 1
  .amdhsa_system_sgpr_workgroup_id_x 1
  .amdhsa_float_denorm_mode_32 3
.end_amdhsa_kernel
"""
    sys.stderr.write(f"auto nops: linear {a}, edges {b}; {sum(1 for i in p.ins if i.states)} instructions\n")
    return out

if __name__ == "__main__":
    import argparse
    ap = argparse.ArgumentParser()
    ap.add_argument("-o", default="gather_scatter__hybrid_graph_tf_exphormer__graph.s")
    ap.add_argument("--stamps", action="store_true")
    ap.add_argument("--dbgstamps", action="store_true")
    ap.add_argument("--stretch", default="")
    ap.add_argument("--force-slow", action="store_true")
    ap.add_argument("--slot-cap", type=int, default=31)
    a = ap.parse_args()
    Opt.stamps = a.stamps or a.dbgstamps; Opt.dbgstamps = a.dbgstamps; Opt.force_slow = a.force_slow
    if a.stretch: Opt.stretch = [int(x) for x in a.stretch.split(',')]; Opt.stamps = True
    Opt.slot_cap = a.slot_cap
    open(a.o, "w").write(build())
```

```python
import sys, os
sys.path.insert(0, os.path.dirname(os.path.abspath(__file__)))
from asmlib import Prog

KNAME = "gather_scatter__hybrid_graph_tf_exphormer__graph_kernel"

SEM = 0
RING = 256
XB = RING + 65536
YB = XB + 20480
ZB = YB + 20480
IMG = ZB
DIS = ZB
SIMG = ZB + 20480
LDS_TOTAL = SIMG + 32768
S_X, S_Q, S_QK, S_AA, S_AL, S_CPY, S_I, S_L, CNT, S_R, S_PF = 0, 4, 8, 12, 16, 20, 24, 28, 32, 48, 52
assert IMG + 32768 <= LDS_TOTAL and LDS_TOTAL <= 163840

NWG = 250
NPROD = 64
SLOT0 = 65536
STAMP0 = 8 << 20
EMPTY = 0xFC000
TAGINC = 0x2C5
FLAG0 = 1024
FLAGLOW = 0x5A5A5
SPIN_MAX = 1 << 21

def v(n, c=1): return f"v{n}" if c == 1 else f"v[{n}:{n+c-1}]"
def s(n, c=1): return f"s{n}" if c == 1 else f"s[{n}:{n+c-1}]"

class Opt:
    stamps = False
    dbgstamps = False
    stretch = None
    force_slow = False
    slot_cap = 31

def build(opt=Opt):
    p = Prog()
    lbl = [0]
    def newl(n):
        lbl[0] += 1
        return f"L_{n}_{lbl[0]}"

    TID, LANE, ZERO, ONE = 0, 1, 2, 3
    SEMA = ZERO
    WV, LINK, W = 3, 30, 32
    T0, T1, T2 = 33, 34, 35
    SRD_X, SRD_OUT, SRD_SRC, SRD_DST = 36, 40, 44, 48
    STAMP = 90

    nstamp = [0]
    def stamp(slot):
        if not opt.stamps: return
        p(f"""s_memrealtime s[90:91]
        s_waitcnt lgkmcnt(0)
        v_writelane_b32 v0, s90, {slot}""")
    def stamp_out():
        if not opt.stamps: return
        p(f"""s_lshl_b32 s92, s2, 3
        s_add_u32 s92, s92, s{WV}
        s_lshl_b32 s92, s92, 7
        s_add_u32 s92, s92, {STAMP0}
        v_lshlrev_b32 v20, 2, v{LANE}
        v_add_u32 v20, s92, v20
        s_mov_b32 exec_hi, 0
        global_store_dword v20, v0, s[28:29]
        s_mov_b64 exec, -1""")
        if opt.dbgstamps:
            L = newl("dbg")
            p(f"""s_and_b32 s90, s{WV}, 3
            s_cmp_lg_u32 s90, 0
            s_cbranch_scc1 {L}
            s_and_b32 s90, s2, 127
            s_cmp_lg_u32 s90, 100
            s_cbranch_scc1 {L}
            v_readlane_b32 s90, v0, 0
            s_nop 3
            v_subrev_u32 v21, s90, v0
            v_lshrrev_b32 v21, 4, v21
            v_min_u32 v21, 255, v21
            s_lshr_b32 s90, s{WV}, 2
            s_mul_i32 s90, s90, 12
            s_add_u32 s90, s90, 4
            s_lshr_b32 s91, s2, 7
            s_mul_i32 s91, s91, 24
            s_add_u32 s90, s90, s91
            v_add_u32 v22, s90, v{LANE}
            s_mov_b64 exec, 0xfff
            global_store_byte v22, v21, s[26:27]
            s_mov_b64 exec, -1""")
            p.label(L)

    def stretch():
        if not opt.stretch: return
        wv, sa, sb, mult = opt.stretch
        L = newl("st"); L2 = newl("st")
        if sa < 0:
            p(f"""s_cmp_lg_u32 s{WV}, {wv}
            s_cbranch_scc1 {L}
            global_load_dword v21, v{ZERO}, s[28:29] offset:64 sc1
            s_waitcnt vmcnt(0)
            v_readfirstlane_b32 s90, v21
            v_readlane_b32 s91, v0, {sb}
            v_readlane_b32 s94, v0, 11
            {"s_mov_b32 s90, s94" if sa == -2 else ""}
            s_sub_u32 s90, s91, s90
            s_max_i32 s90, s90, 0
            s_mul_i32 s90, s90, {mult}
            s_min_u32 s90, s90, 200000""")
            p.label(L2)
            p(f"""s_memrealtime s[96:97]
            s_waitcnt lgkmcnt(0)
            s_sub_u32 s96, s96, s94
            s_cmp_lt_u32 s96, s90
            s_cbranch_scc1 {L2}""")
            p.label(L)
            return
        p(f"""s_cmp_lg_u32 s2, 100
        s_cbranch_scc1 {L}
        s_cmp_lg_u32 s{WV}, {wv}
        s_cbranch_scc1 {L}
        v_readlane_b32 s90, v0, {sa}
        v_readlane_b32 s91, v0, {sb}
        v_readlane_b32 s94, v0, 11
        s_sub_u32 s90, s91, s90
        s_mul_i32 s90, s90, {mult}
        s_min_u32 s90, s90, 200000""")
        p.label(L2)
        p(f"""s_memrealtime s[96:97]
        s_waitcnt lgkmcnt(0)
        s_sub_u32 s96, s96, s94
        s_cmp_lt_u32 s96, s90
        s_cbranch_scc1 {L2}""")
        p.label(L)

    def srd(base, ptr, size):
        p(f"""s_mov_b32 s{base}, s{ptr}
        s_mov_b32 s{base+1}, s{ptr+1}
        s_mov_b32 s{base+2}, {size}
        s_mov_b32 s{base+3}, 0x20000""")

    def signal(off, val=ONE):
        p(f"""s_mov_b64 exec, 1
        ds_add_u32 v{SEMA}, v{val} offset:{off}
        s_mov_b64 exec, -1""")

    def semwait(off, target, tmpv, mask=None, keep=None):
        L = newl("sw")
        p.label(L)
        p(f"""ds_read_b32 v{tmpv}, v{SEMA} offset:{off}
        s_waitcnt lgkmcnt(0)
        v_readfirstlane_b32 s{T0}, v{tmpv}""")
        if keep is not None: p(f"s_mov_b32 s{keep}, s{T0}")
        if mask is not None: p(f"s_and_b32 s{T0}, s{T0}, {mask}")
        L2 = newl("sd")
        p(f"""s_cmp_ge_u32 s{T0}, {target}
        s_cbranch_scc1 {L2}
        s_add_u32 s93, s93, 1
        s_cmp_lt_u32 s93, {SPIN_MAX}
        s_cbranch_scc1 {L}
        s_endpgm""")
        p.label(L2)

    p(f"""s_cmp_gt_u32 s2, {NWG}
    s_cbranch_scc1 L_end
    s_load_dwordx16 s[4:19], s[0:1], 0
    s_load_dwordx8 s[20:27], s[0:1], 64
    s_load_dwordx2 s[28:29], s[0:1], 96
    v_lshrrev_b32 v4, 6, v0
    v_and_b32 v{LANE}, 63, v0
    v_readfirstlane_b32 s{WV}, v4
    v_mov_b32 v{ZERO}, 0
    v_mov_b32 v{ONE}, 1
    s_mov_b32 s93, 0
    v_lshlrev_b32 v4, 2, v{LANE}
    s_cmp_eq_u32 s2, {NWG}
    s_cbranch_scc1 L_upd
    ds_write_b32 v4, v{ZERO}
    s_and_b32 s{W}, s{WV}, 3
    s_cmp_ge_u32 s2, {NPROD}
    s_cbranch_scc1 L_noimg
    v_mov_b32 v8, {EMPTY}
    v_mov_b32 v9, {EMPTY}
    v_mov_b32 v10, {EMPTY}
    v_mov_b32 v11, {EMPTY}
    v_lshlrev_b32 v4, 4, v0
    v_add_u32 v4, {IMG}, v4
    ds_write_b128 v4, v[8:11]
    ds_write_b128 v4, v[8:11] offset:8192
    ds_write_b128 v4, v[8:11] offset:16384
    ds_write_b128 v4, v[8:11] offset:24576
    v_lshlrev_b32 v4, 2, v0
    s_mul_i32 s{T0}, s2, 10000
    s_movk_i32 s{T1}, 4096
    s_movk_i32 s{T2}, 8192
    s_waitcnt lgkmcnt(0)""")
    BD, BS, BB, BH, BR, BT = 200, 205, 210, 215, 220, 225
    p(f"""s_add_u32 s{SRD_DST}, s8, s{T0}
    s_addc_u32 s{SRD_DST+1}, s9, 0
    s_mov_b32 s{SRD_DST+2}, 10000
    s_mov_b32 s{SRD_DST+3}, 0x20000
    s_add_u32 s{SRD_SRC}, s6, s{T0}
    s_addc_u32 s{SRD_SRC+1}, s7, 0
    s_mov_b32 s{SRD_SRC+2}, 10000
    s_mov_b32 s{SRD_SRC+3}, 0x20000""")
    for i, (so, im) in enumerate([("0", 0), ("0", 2048), (f"s{T1}", 0), (f"s{T1}", 2048), (f"s{T2}", 0)]):
        p(f"buffer_load_dword v{BD+i}, v4, s[{SRD_DST}:{SRD_DST+3}], {so} offen offset:{im}")
    for i, (so, im) in enumerate([("0", 0), ("0", 2048), (f"s{T1}", 0), (f"s{T1}", 2048), (f"s{T2}", 0)]):
        p(f"buffer_load_dword v{BS+i}, v4, s[{SRD_SRC}:{SRD_SRC+3}], {so} offen offset:{im}")
    p.label("L_noimg")
    p("s_waitcnt lgkmcnt(0)")
    p("s_barrier")
    if opt.stamps: p('v_mov_b32 v0, 0')
    stamp(0)
    if opt.stretch and opt.stretch[1] < 0:
        L = newl("w0")
        p(f"""s_add_u32 s90, s2, s{WV}
        s_cmp_lg_u32 s90, 0
        s_cbranch_scc1 {L}
        v_readlane_b32 s90, v0, 0
        s_nop 1
        v_mov_b32 v20, s90
        global_store_dword v{ZERO}, v20, s[28:29] offset:64 sc0 sc1
        s_waitcnt vmcnt(0)""")
        p.label(L)
    srd(SRD_X, 4, 5120000)
    srd(SRD_OUT, 24, 5120000)
    p(f"""s_cmp_ge_u32 s{WV}, 4
    s_cbranch_scc1 L_A""")

    DC, DK, DT = 4, 8, 12
    VT, VK, VB, VF01, VF2 = 16, 20, 22, 26, 27
    VQ01, VQ2, VQK, VOUT = 28, 29, 30, 34
    GT = 38
    PA, PB, QA, QB = 48, 64, 76, 92
    ACC1, ACC2 = 104, 152
    SRD_W, SRD_PF, SOFF, RB, IT = 52, 56, 60, 64, 65
    J, G4 = 240, 241

    stamp(12)
    p(f"""v_lshrrev_b32 v{GT+2}, 5, v{LANE}
    s_mul_i32 s{T0}, s{W}, 10
    v_add_u32 v{GT+2}, s{T0}, v{GT+2}
    v_and_b32 v{GT+3}, 31, v{LANE}
    s_mul_i32 s{T1}, s2, 20480
    s_mul_i32 s{T2}, s{W}, 5120
    s_add_u32 s{T2}, s{T2}, {XB}""")
    for k in range(5):
        p(f"""v_and_b32 v{GT+4}, 15, v{GT+2}
        v_xor_b32 v{GT+4}, v{GT+4}, v{GT+3}
        v_lshlrev_b32 v{GT+4}, 4, v{GT+4}
        v_lshl_add_u32 v{GT+4}, v{GT+2}, 9, v{GT+4}
        s_add_u32 m0, s{T2}, {k*1024}
        v_add_u32 v{GT+2}, 2, v{GT+2}
        buffer_load_dwordx4 v{GT+4}, s[{SRD_X}:{SRD_X+3}], s{T1} offen lds""")
    p(f"""s_cmp_eq_u32 s{W}, 1
    s_cselect_b64 s[{SRD_PF}:{SRD_PF+1}], s[20:21], s[18:19]
    s_cmp_eq_u32 s{W}, 2
    s_cselect_b64 s[{SRD_PF}:{SRD_PF+1}], s[22:23], s[{SRD_PF}:{SRD_PF+1}]
    s_cmp_eq_u32 s{W}, 3
    s_cselect_b64 s[{SRD_PF}:{SRD_PF+1}], s[16:17], s[{SRD_PF}:{SRD_PF+1}]
    s_mov_b32 s{SRD_PF+2}, 131072
    s_mov_b32 s{SRD_PF+3}, 0x20000
    s_lshr_b32 s{T0}, s2, 3
    s_and_b32 s{T0}, s{T0}, 31
    s_lshl_b32 s{T0}, s{T0}, 12
    v_lshlrev_b32 v{GT}, 7, v{LANE}
    s_mov_b32 exec_hi, 0
    buffer_load_dword v{GT+1}, v{GT}, s[{SRD_PF}:{SRD_PF+3}], s{T0} offen
    s_mov_b32 exec_hi, -1""")
    p(f"""v_lshrrev_b32 v{GT}, 3, v{LANE}
    v_and_b32 v{GT+2}, 7, v{LANE}
    v_and_b32 v{GT+3}, 2, v{GT}
    v_xor_b32 v{GT+3}, v{GT+3}, v{GT+2}
    v_lshlrev_b32 v{GT+4}, 9, v{GT}
    s_lshl_b32 s{T0}, s{W}, 7
    v_add_u32 v{GT+4}, s{T0}, v{GT+4}
    v_lshl_add_u32 v{DT}, v{GT+3}, 4, v{GT+4}
    v_xor_b32 v{GT+3}, 4, v{GT+3}
    v_lshl_add_u32 v{DT+1}, v{GT+3}, 4, v{GT+4}
    v_add_u32 v{DT+2}, {2*15360}, v{DT}
    v_add_u32 v{DT+3}, {3*15360}, v{DT+1}
    v_add_u32 v{DT+1}, {15360}, v{DT+1}
    s_lshl_b32 s{RB}, s{W}, 14
    s_add_u32 s{RB}, s{RB}, {RING}""")
    p(f"""s_mov_b32 s{SRD_W}, s18
    s_mov_b32 s{SRD_W+1}, s19
    s_mov_b32 s{SRD_W+2}, 131072
    s_mov_b32 s{SRD_W+3}, 0x20000""")

    def set_soff_T(h):
        for j in range(4): p(f"s_mov_b32 s{SOFF+j}, {j*4096 + h*65536}")
    def set_soff_K(b):
        for j in range(4): p(f"s_mov_b32 s{SOFF+j}, {(j>>1)*128 + (j&1)*16384 + b*256}")
    def issue(j, regs=DC):
        p(f"s_add_u32 m0, s{RB}, {j*4096}")
        for g in range(4):
            p(f"buffer_load_dwordx4 v{regs+g}, s[{SRD_W}:{SRD_W+3}], s{SOFF+j} offen offset:{g*1024} lds")
    set_soff_T(0)
    for j in range(4): issue(j, DT)
    stamp(13)
    p(f"""v_lshrrev_b32 v{GT+3}, 1, v{GT}
    v_xor_b32 v{GT+3}, v{GT+3}, v{GT+2}
    s_lshl_b32 s{T0}, s{W}, 15
    v_lshlrev_b32 v{GT+4}, 9, v{GT}
    v_add_u32 v{GT+4}, s{T0}, v{GT+4}
    v_lshl_add_u32 v{DK}, v{GT+3}, 4, v{GT+4}
    v_xor_b32 v{GT+3}, 4, v{GT+3}
    v_lshl_add_u32 v{DK+1}, v{GT+3}, 4, v{GT+4}
    v_add_u32 v{DK+2}, {2*3072}, v{DK}
    v_add_u32 v{DK+3}, {3*3072}, v{DK+1}
    v_add_u32 v{DK+1}, {3072}, v{DK+1}""")
    for g in range(4): p(f"v_mov_b32 v{DC+g}, v{DT+g}")
    p(f"""v_and_b32 v{J}, 15, v{LANE}
    v_lshrrev_b32 v{G4}, 4, v{LANE}""")
    p(f"""v_bfe_u32 v{GT}, v{LANE}, 2, 2
    v_and_b32 v{GT+2}, 3, v{LANE}
    v_lshlrev_b32 v{GT+3}, 10, v{G4}
    v_lshl_add_u32 v{GT+3}, v{GT}, 7, v{GT+3}
    v_lshl_add_u32 v{GT+3}, v{GT+2}, 3, v{GT+3}
    v_add_u32 v{GT+3}, s{RB}, v{GT+3}
    v_and_b32 v{GT+4}, 1, v{G4}
    v_lshlrev_b32 v{GT+4}, 1, v{GT+4}
    v_lshrrev_b32 v{GT}, 1, v{GT}
    v_or_b32 v{GT+4}, v{GT+4}, v{GT}""")
    for t in range(4):
        p(f"""v_xor_b32 v{GT}, {t}, v{GT+4}
        v_lshl_add_u32 v{VT+t}, v{GT}, 5, v{GT+3}""")
    p(f"""v_lshrrev_b32 v{GT}, 3, v{J}
    v_and_b32 v{GT+2}, 7, v{J}
    v_lshlrev_b32 v{GT}, 10, v{GT}
    v_lshl_add_u32 v{GT}, v{GT+2}, 7, v{GT}
    v_add_u32 v{GT}, s{RB}, v{GT}
    v_lshrrev_b32 v{GT+3}, 1, v{J}
    v_xor_b32 v{GT+3}, v{GT+3}, v{G4}
    v_lshl_add_u32 v{VK}, v{GT+3}, 4, v{GT}
    v_xor_b32 v{GT+3}, 4, v{GT+3}
    v_lshl_add_u32 v{VK+1}, v{GT+3}, 4, v{GT}""")
    p(f"""v_lshlrev_b32 v{GT}, 9, v{J}
    v_add_u32 v{GT}, {XB}, v{GT}
    v_lshlrev_b32 v{GT+3}, 2, v{G4}
    v_xor_b32 v{GT+3}, v{GT+3}, v{J}""")
    for r in range(4):
        p(f"""v_xor_b32 v{GT+4}, {r}, v{GT+3}
        v_lshl_add_u32 v{VB+r}, v{GT+4}, 4, v{GT}""")
    p(f"""v_lshlrev_b32 v{GT+3}, 4, v{J}
    v_lshl_add_u32 v{VF01}, v{G4}, 8, v{GT+3}
    v_add_u32 v{VF01}, {YB}, v{VF01}
    v_lshlrev_b32 v{GT+3}, 4, v{GT+2}
    v_lshl_add_u32 v{VF2}, v{G4}, 7, v{GT+3}
    v_add_u32 v{VF2}, {YB+2048}, v{VF2}""")
    p(f"""v_lshrrev_b32 v{GT+4}, 1, v{G4}
    v_and_b32 v{GT+5}, 1, v{G4}
    v_lshlrev_b32 v{GT+5}, 3, v{GT+5}
    s_mul_i32 s{T0}, s{W}, 5120
    s_add_u32 s{T0}, s{T0}, {YB}
    v_lshl_add_u32 v{GT+6}, v{J}, 4, v{GT+5}
    v_lshl_add_u32 v{GT+6}, v{GT+4}, 8, v{GT+6}
    v_add_u32 v{VQ01}, s{T0}, v{GT+6}
    v_add_u32 v{GT+6}, v{GT+3}, v{GT+5}
    v_lshl_add_u32 v{GT+6}, v{GT+4}, 7, v{GT+6}
    s_add_u32 s{T0}, s{T0}, 2048
    v_add_u32 v{VQ2}, s{T0}, v{GT+6}""")
    p(f"""s_lshl_b32 s{T0}, s{W}, 7
    v_add_u32 v{GT}, s{T0}, v{GT}
    v_add_u32 v{GT}, v{GT}, v{GT+5}
    s_lshr_b32 s{T0}, s{W}, 1
    s_lshl_b32 s{T0}, s{T0}, 7
    s_add_u32 s{T0}, s{T0}, s{RB}
    v_lshl_add_u32 v{GT+6}, v{J}, 7, v{GT+5}
    v_add_u32 v{GT+6}, s{T0}, v{GT+6}
    v_xor_b32 v{GT+4}, v{GT+4}, v{GT+2}""")
    for t in range(4):
        p(f"""v_xor_b32 v{GT+3}, {2*t}, v{GT+4}
        v_lshl_add_u32 v{VQK+t}, v{GT+3}, 4, v{GT}
        v_lshl_add_u32 v{VOUT+t}, v{GT+3}, 4, v{GT+6}""")
    for i in range(48): p(f"v_mov_b32 v{ACC1+i}, 0")
    for i in range(48): p(f"v_mov_b32 v{ACC2+i}, 0")
    stamp(14)
    p(f"""s_cmp_ge_u32 s2, {NPROD}
    s_cbranch_scc1 L_G_nobin
    s_waitcnt vmcnt(22)""")
    stamp(16)
    p(f"""s_call_b64 s[{LINK}:{LINK+1}], L_bin""")
    stamp(17)
    p.label("L_G_nobin")
    p("s_waitcnt vmcnt(17)")
    signal(S_X)
    stamp(1)
    semwait(S_X, 4, GT)
    stamp(2)

    def acc(base, t, T): return base + (t*3 + T)*4
    def mfmas(base, A, B):
        for t in range(4):
            for T in range(3):
                a = acc(base, t, T)
                p(f"v_mfma_f32_16x16x32_bf16 {v(a,4)}, {v(A+4*t,4)}, {v(B+4*T,4)}, {v(a,4)}")
    def read_T(j, A):
        for t in range(4):
            p(f"ds_read_b64_tr_b16 {v(A+4*t,2)}, v{VT+t} offset:{j*4096}")
            p(f"ds_read_b64_tr_b16 {v(A+4*t+2,2)}, v{VT+t} offset:{j*4096+512}")
    def read_Bx(r, B):
        for T in range(3): p(f"ds_read_b128 {v(B+4*T,4)}, v{VB+r} offset:{T*8192}")
    def read_Bf(r, B):
        p(f"ds_read_b128 {v(B,4)}, v{VF01} offset:{r*2560}")
        p(f"ds_read_b128 {v(B+4,4)}, v{VF01} offset:{r*2560+1024}")
        p(f"ds_read_b128 {v(B+8,4)}, v{VF2} offset:{r*2560}")
    sets = [(PA, PB), (QA, QB)]
    def bodyT(readB, base, last_cond=False):
        def W(n, nlast):
            p(f"s_waitcnt vmcnt({n})")
            if last_cond and nlast != n:
                L = newl("w")
                p(f"""s_cbranch_scc0 {L}
                s_waitcnt vmcnt({nlast})""")
                p.label(L)
        def I(j):
            if last_cond:
                L = newl("i")
                p(f"s_cbranch_scc1 {L}")
                issue(j)
                p(f"s_cmp_eq_u32 s{IT}, 3")
                p.label(L)
            else:
                issue(j)
        if last_cond: p(f"s_cmp_eq_u32 s{IT}, 3")
        W(12, 12); read_T(0, PA); readB(0, PB)
        W(8, 8); read_T(1, QA); readB(1, QB)
        p("s_waitcnt lgkmcnt(11)"); I(0); mfmas(base, PA, PB)
        W(8, 4); read_T(2, PA); readB(2, PB)
        p("s_waitcnt lgkmcnt(11)"); I(1); mfmas(base, QA, QB)
        W(8, 0); read_T(3, QA); readB(3, QB)
        p("s_waitcnt lgkmcnt(11)"); I(2); mfmas(base, PA, PB)
        p("s_waitcnt lgkmcnt(0)"); I(3); mfmas(base, QA, QB)

    def read_K(pi, kk, A):
        for t in range(4):
            p(f"ds_read_b128 {v(A+4*t,4)}, v{VK+kk} offset:{(2*pi + (t>>1))*4096 + (t&1)*2048}")
    def bodyK(base):
        p("s_waitcnt vmcnt(8)")
        read_K(0, 0, PA); read_Bf(0, PB)
        read_K(0, 1, QA); read_Bf(1, QB)
        p("s_waitcnt lgkmcnt(7)"); mfmas(base, PA, PB)
        p("s_waitcnt lgkmcnt(0)"); issue(0); issue(1)
        p("s_waitcnt vmcnt(8)")
        read_K(1, 0, PA); read_Bf(2, PB)
        mfmas(base, QA, QB)
        read_K(1, 1, QA); read_Bf(3, QB)
        p("s_waitcnt lgkmcnt(7)"); mfmas(base, PA, PB)
        p("s_waitcnt lgkmcnt(0)"); issue(2); issue(3)
        mfmas(base, QA, QB)

    def cvt_write(base, addr_of, mask_T2):
        k = 0
        for T in range(3):
            if T == 2 and mask_T2: p("s_mov_b32 exec_lo, 0x00ff00ff\ns_mov_b32 exec_hi, 0x00ff00ff")
            for t in range(4):
                a = acc(base, t, T); d = GT + 2*(k % 4); k += 1
                p(f"v_cvt_pk_bf16_f32 v{d}, v{a}, v{a+1}")
                p(f"v_cvt_pk_bf16_f32 v{d+1}, v{a+2}, v{a+3}")
                r, im = addr_of(t, T)
                p(f"ds_write_b64 v{r}, {v(d,2)} offset:{im}")
            if T == 2 and mask_T2: p("s_mov_b64 exec, -1")

    set_soff_T(1)
    p(f"s_mov_b32 s{IT}, 0")
    p.label("L_g1")
    bodyT(read_Bx, ACC1)
    p(f"""s_cmp_lg_u32 s{IT}, 0
    s_cbranch_scc1 L_g1_done
    s_mov_b32 s{IT}, 1
    s_mov_b32 s{SRD_W}, s20
    s_mov_b32 s{SRD_W+1}, s21""")
    set_soff_K(0)
    for g in range(4): p(f"v_mov_b32 v{DC+g}, v{DK+g}")
    for r in range(4): p(f"v_add_u32 v{VB+r}, 256, v{VB+r}")
    p("s_branch L_g1")
    p.label("L_g1_done")
    stamp(3)
    cvt_write(ACC1, lambda t, T: (VQ01, (t>>1)*2560 + (t&1)*512 + T*1024) if T < 2 else (VQ2, (t>>1)*2560 + (t&1)*256), True)
    signal(S_Q)
    for i in range(48): p(f"v_mov_b32 v{ACC1+i}, 0")
    set_soff_K(1)
    p(f"s_mov_b32 s{IT}, 0")
    semwait(S_Q, 4, GT)
    stamp(4)
    p.label("L_g2")
    bodyK(ACC2)
    p(f"""s_cmp_lg_u32 s{IT}, 0
    s_cbranch_scc1 L_g2_done
    s_mov_b32 s{IT}, 1
    s_mov_b32 s{SRD_W}, s22
    s_mov_b32 s{SRD_W+1}, s23""")
    set_soff_T(0)
    for g in range(4): p(f"v_mov_b32 v{DC+g}, v{DT+g}")
    p(f"""v_add_u32 v{VF01}, 10240, v{VF01}
    v_add_u32 v{VF2}, 10240, v{VF2}
    s_branch L_g2""")
    p.label("L_g2_done")
    stamp(5)
    cvt_write(ACC2, lambda t, T: (VQK+t, T*8192), True)
    signal(S_QK)
    p(f"""v_subrev_u32 v{VF01}, 10240, v{VF01}
    v_subrev_u32 v{VF2}, 10240, v{VF2}""")
    set_soff_T(1)
    PARK = ACC2
    for j in range(4):
        p("s_waitcnt vmcnt(12)")
        read_T(j, PARK + 16*j)
        p("s_waitcnt lgkmcnt(0)")
        issue(j)
    p(f"""s_mov_b32 s{SRD_W}, s16
    s_mov_b32 s{SRD_W+1}, s17""")
    set_soff_T(0)
    p(f"s_mov_b32 s{IT}, 1")
    stamp(15)
    semwait(S_AA, 4, GT)
    stamp(6)
    read_Bf(0, PB); read_Bf(1, QB)
    p("s_waitcnt lgkmcnt(3)"); mfmas(ACC1, PARK, PB)
    read_Bf(2, PB)
    p("s_waitcnt lgkmcnt(3)"); mfmas(ACC1, PARK+16, QB)
    read_Bf(3, QB)
    p("s_waitcnt lgkmcnt(3)"); mfmas(ACC1, PARK+32, PB)
    p(f"""v_add_u32 v{VF01}, 10240, v{VF01}
    v_add_u32 v{VF2}, 10240, v{VF2}
    s_waitcnt lgkmcnt(0)""")
    mfmas(ACC1, PARK+48, QB)
    p.label("L_g3")
    bodyT(read_Bf, ACC1, last_cond=True)
    p(f"""s_cbranch_scc1 L_g3_done
    s_add_u32 s{IT}, s{IT}, 1
    s_cmp_eq_u32 s{IT}, 2
    s_cbranch_scc1 L_g3_mid
    v_add_u32 v{VF01}, 10240, v{VF01}
    v_add_u32 v{VF2}, 10240, v{VF2}
    s_branch L_g3""")
    p.label("L_g3_mid")
    p(f"""v_subrev_u32 v{VF01}, {10240 + YB - XB}, v{VF01}
    v_subrev_u32 v{VF2}, {10240 + YB - XB}, v{VF2}""")
    set_soff_T(1)
    stamp(7)
    semwait(S_AL, 4, GT)
    stamp(8)
    p("s_branch L_g3")
    p.label("L_g3_done")
    stamp(9)
    cvt_write(ACC1, lambda t, T: (VOUT+t, T*2048), False)
    p("s_branch L_final")

    p.label("L_bin")
    p(f"""s_movk_i32 s{T0}, -40
    s_mov_b32 s{T1}, {IMG}
    s_mov_b32 s{T2}, {EMPTY + opt.slot_cap}
    v_lshl_add_u32 v{BT}, s{WV}, 6, v{LANE}
    v_cmp_gt_u32 vcc, 452, v{BT}
    s_mov_b64 s[96:97], vcc""")
    for i in range(5):
        p(f"""v_mul_u32_u24 v{BB+i}, 52429, v{BD+i}
        v_lshrrev_b32 v{BB+i}, 21, v{BB+i}
        v_mad_i32_i24 v{BD+i}, v{BB+i}, s{T0}, v{BD+i}
        v_mul_u32_u24 v{BT}, 26, v{BD+i}
        v_lshrrev_b32 v{BT}, 8, v{BT}
        v_mad_u32_u24 v{BD+i}, v{BT}, 6, v{BD+i}
        v_and_b32 v{BT}, 31, v{BB+i}
        v_lshl_add_u32 v{BR+i}, v{BB+i}, 7, s{T1}
        v_lshl_add_u32 v{BH+i}, v{BT}, 2, v{BR+i}""")
        if i == 4: p("s_mov_b64 exec, s[96:97]")
        p(f"ds_add_rtn_u32 v{BH+i}, v{BH+i}, v{ONE}")
        p(f"v_lshl_or_b32 v{BS+i}, v{BD+i}, 14, v{BS+i}")
    p("s_mov_b64 exec, -1")
    for i in range(5):
        p(f"""s_waitcnt lgkmcnt(4)
        v_add3_u32 v{BT}, v{BB+i}, v{BH+i}, 1
        v_and_b32 v{BT}, 31, v{BT}
        v_lshl_add_u32 v{BT}, v{BT}, 2, v{BR+i}
        v_cmp_gt_u32 vcc, s{T2}, v{BH+i}""")
        if i == 4: p("s_and_b64 exec, vcc, s[96:97]")
        else: p("s_mov_b64 exec, vcc")
        p(f"""ds_write_b32 v{BT}, v{BS+i}
        s_mov_b64 exec, -1""")
    p(f"""s_waitcnt lgkmcnt(0)
    s_barrier
    s_setpc_b64 s[{LINK}:{LINK+1}]""")

    CG16, M0, M1, M2, QKA, FW, DISD, LRD, SRD_ = 4, 5, 6, 7, 8, 11, 12, 13, 14
    AD, IDX, S0, S1, P0, P1, EN, DV = 16, 24, 28, 32, 36, 40, 44, 52
    AT = 62
    ACC = 64
    H = [128, 160, 192, 224]
    SRD_E, SRD_DIS, SRD_WS = 52, 56, 60
    TAGP, OVF, RHO, MODE, SEL0, SEL1, TL, TR = 64, 65, 66, 67, 68, 69, 70, 71
    MK = 72
    CDIS, CCNT, CSIMG, C512 = 88, 89, 98, 99
    def tag_from_v15():
        p(f"""v_readfirstlane_b32 s{TAGP}, v15
        s_lshr_b32 s{TAGP}, s{TAGP}, 20
        s_add_u32 s{TAGP}, s{TAGP}, {TAGINC}
        s_lshl_b32 s{TAGP}, s{TAGP}, 20""")
    p.label("L_A")
    p(f"""s_mov_b32 s{SRD_E}, s10
    s_mov_b32 s{SRD_E+1}, s11
    s_mov_b32 s{SRD_E+2}, 160000
    s_mov_b32 s{SRD_E+3}, 0x20000
    s_mul_i32 s{T0}, s2, 640
    s_mul_i32 s{T1}, s{W}, 160
    s_add_u32 s{T0}, s{T0}, s{T1}
    v_lshrrev_b32 v{AT}, 4, v{LANE}
    v_lshlrev_b32 v{AD}, 5, v{AT}
    v_lshlrev_b32 v{AD+1}, 3, v{AT}
    buffer_load_dwordx4 {v(EN,4)}, v{AD}, s[{SRD_E}:{SRD_E+3}], s{T0} offen
    buffer_load_dwordx4 {v(EN+4,4)}, v{AD}, s[{SRD_E}:{SRD_E+3}], s{T0} offen offset:16
    buffer_load_dwordx2 {v(DV,2)}, v{AD+1}, s[{SRD_E}:{SRD_E+3}], s{T0} offen offset:128
    global_load_dword v15, v{ZERO}, s[28:29] sc1""")
    srd(SRD_DIS, 14, 20000)
    p(f"""s_add_u32 s{SRD_WS}, s28, {SLOT0}
    s_addc_u32 s{SRD_WS+1}, s29, 0
    s_mov_b32 s{SRD_WS+2}, {256*8192}
    s_mov_b32 s{SRD_WS+3}, 0x20000
    s_mov_b32 s{SEL0}, 0x05040100
    s_mov_b32 s{SEL1}, 0x07060302
    s_mov_b32 s{CDIS}, {DIS}
    s_mov_b32 s{CCNT}, {SEM + CNT}
    s_mov_b32 s{CSIMG}, {SIMG}
    s_movk_i32 s{C512}, 512
    s_mov_b32 s{MODE}, 0
    s_mov_b32 s{TL}, 0
    s_mov_b32 s{TR}, 0""")
    p(f"""v_and_b32 v{AT+1}, 15, v{LANE}
    v_lshlrev_b32 v{CG16}, 4, v{AT+1}
    v_lshlrev_b32 v{P0}, 1, v{AT}
    v_cmp_eq_u32 vcc, v{P0}, v{AT+1}
    v_add_u32 v{P0+1}, 1, v{P0}
    v_cmp_eq_u32 s[72:73], v{P0+1}, v{AT+1}
    v_lshrrev_b32 v{P0+2}, 1, v{AT}
    v_add_u32 v{P0+2}, 8, v{P0+2}
    v_cmp_eq_u32 s[74:75], v{P0+2}, v{AT+1}
    v_cndmask_b32_e64 v{M0}, 0, -1, vcc
    v_cndmask_b32_e64 v{M1}, 0, -1, s[72:73]
    v_cndmask_b32_e64 v{M2}, 0, -1, s[74:75]
    s_mul_i32 s{T0}, s{W}, 10""")
    for e in range(3):
        p(f"""v_add_u32 v{P1}, s{T0}, v{P0+e}
        v_and_b32 v{P1+1}, 7, v{P1}
        v_xor_b32 v{P1+1}, v{P1+1}, v{AT+1}
        v_lshlrev_b32 v{P1+1}, 4, v{P1+1}
        v_lshl_add_u32 v{P1+1}, v{P1}, 9, v{P1+1}
        v_add_u32 v{QKA+e}, {XB}, v{P1+1}""")
    p(f"""v_add_u32 v{P1}, s{T0}, v{AT+1}
    v_and_b32 v{P1+1}, 15, v{P1}
    v_lshrrev_b32 v{P1+2}, 4, v{P1}
    v_lshlrev_b32 v{P1+2}, 10, v{P1+2}
    v_lshl_add_u32 v{P1+2}, v{P1+1}, 4, v{P1+2}
    v_lshl_add_u32 v{P1+3}, v{AT}, 8, v{P1+2}
    v_lshl_add_u32 v{P1+2}, v{AT}, 7, v{P1+2}
    v_cmp_gt_u32 vcc, 32, v{P1}
    s_mul_i32 s{T1}, s2, 40
    v_add_u32 v{DISD}, s{T1}, v{P1}
    v_cndmask_b32_e64 v{FW}, v{P1+2}, v{P1+3}, vcc
    v_add_u32 v{FW}, {YB}, v{FW}
    v_lshl_add_u32 v{DISD}, v{DISD}, 1, s{CDIS}""")
    p(f"""s_lshl_b32 s{T0}, s{W}, 8
    s_add_u32 s{T0}, s{T0}, {SIMG}
    v_lshl_add_u32 v{SRD_}, v{AT}, 10, v{CG16}
    v_add_u32 v{SRD_}, s{T0}, v{SRD_}
    v_or_b32 v{LRD}, 240, v{SRD_}""")
    stamp(14)
    p(f"""s_cmp_ge_u32 s2, {NPROD}
    s_cbranch_scc1 L_A_nobin
    s_waitcnt vmcnt(4)""")
    stamp(16)
    p(f"""s_call_b64 s[{LINK}:{LINK+1}], L_bin""")
    stamp(17)
    p(f"""v_lshl_add_u32 v{P0}, s{W}, 6, v{LANE}
    v_lshlrev_b32 v{P0+1}, 4, v{P0}
    v_add_u32 v{P0+1}, {IMG}, v{P0+1}""")
    for k in range(8): p(f"ds_read_b128 {v(ACC+4*k,4)}, v{P0+1} offset:{k*4096}")
    p(f"""v_lshrrev_b32 v{P0+2}, 3, v{P0}
    v_and_b32 v{P0+3}, 7, v{P0}
    v_lshlrev_b32 v{P0+2}, 13, v{P0+2}
    v_lshlrev_b32 v{P0+3}, 4, v{P0+3}
    s_lshl_b32 s{T0}, s2, 7
    v_add3_u32 v{P0+2}, v{P0+2}, v{P0+3}, s{T0}
    s_waitcnt vmcnt(0)""")
    tag_from_v15()
    p(f"s_mov_b32 s{T0}, 0")
    for k in range(8):
        p(f"s_waitcnt lgkmcnt({7-k})")
        for d in range(4): p(f"v_or_b32 v{ACC+4*k+d}, s{TAGP}, v{ACC+4*k+d}")
        p(f"buffer_store_dwordx4 {v(ACC+4*k,4)}, v{P0+2}, s[{SRD_WS}:{SRD_WS+3}], s{T0} offen sc1")
        if k < 7: p(f"s_add_u32 s{T0}, s{T0}, {32*8192}")
    signal(S_CPY)
    stamp(1)
    p("s_branch L_A_rows")
    p.label("L_A_nobin")
    p("s_waitcnt vmcnt(0)")
    tag_from_v15()
    p.label("L_A_rows")
    stamp(18)
    for i in range(8):
        p(f"""v_lshl_add_u32 v{AD+i}, v{EN+i}, 9, v{CG16}
        buffer_load_dwordx4 {v(H[0]+4*i,4)}, v{AD+i}, s[{SRD_X}:{SRD_X+3}], 0 offen
        buffer_load_dwordx4 {v(H[1]+4*i,4)}, v{AD+i}, s[{SRD_X}:{SRD_X+3}], 0 offen offset:256""")
    for i in range(2):
        p(f"""v_lshl_add_u32 v{IDX+i}, v{DV+i}, 9, v{CG16}
        buffer_load_dwordx4 {v(H[2]+8*i,4)}, v{IDX+i}, s[{SRD_X}:{SRD_X+3}], 0 offen
        buffer_load_dwordx4 {v(H[2]+8*i+4,4)}, v{IDX+i}, s[{SRD_X}:{SRD_X+3}], 0 offen offset:256""")
    p(f"""s_cmp_lg_u32 s{W}, 0
    s_cbranch_scc1 L_A_noflag
    s_or_b32 s{T0}, s{TAGP}, {FLAGLOW}
    s_lshl_b32 s{T1}, s2, 2
    v_mov_b32 v{AT}, s{T0}
    v_mov_b32 v{AT+1}, s{T1}
    s_mov_b64 exec, 1
    global_store_dword v{AT+1}, v{AT}, s[28:29] offset:{FLAG0} sc1
    s_mov_b64 exec, -1""")
    p.label("L_A_noflag")
    stamp(2)
    p(f"""s_cmp_ge_u32 s2, {NPROD}
    s_cbranch_scc1 L_A_nocpy""")
    semwait(S_CPY, 4, AT)
    p.label("L_A_nocpy")
    p(f"""v_lshlrev_b32 v{P0}, 4, v{LANE}
    s_mul_i32 s{T0}, s{W}, 5120
    s_add_u32 s{T1}, s{T0}, {DIS}""")
    for k in range(5):
        p(f"""s_add_u32 m0, s{T1}, {k*1024}
        s_nop 0
        buffer_load_dwordx4 v{P0}, s[{SRD_DIS}:{SRD_DIS+3}], s{T0} offen lds""")
        if k < 4: p(f"s_add_u32 s{T0}, s{T0}, 1024")
    p(f"s_call_b64 s[{LINK}:{LINK+1}], L_init")
    p(f"""v_mov_b32 v{P1+1}, 0
    v_mov_b32 v{P1+3}, 0
    v_mov_b32 v{P0+1}, 0
    v_mov_b32 v{P0+3}, 0
    v_mov_b32 v{S1+1}, 0
    s_lshl_b32 s{T0}, s{W}, 11
    s_lshl_b32 s{T1}, s2, 13
    s_add_u32 s{T0}, s{T0}, s{T1}
    v_lshlrev_b32 v15, 4, v{LANE}
    v_add_u32 v15, s{T0}, v15
    s_waitcnt vmcnt(0)""")
    signal(S_I)
    stamp(3)
    p.label("L_poll")
    p(f"""buffer_load_dwordx4 {v(EN,4)}, v15, s[{SRD_WS}:{SRD_WS+3}], 0 offen sc1
    buffer_load_dwordx4 {v(EN+4,4)}, v15, s[{SRD_WS}:{SRD_WS+3}], 0 offen offset:1024 sc1
    s_waitcnt vmcnt(0)""")
    for k in range(8): p(f"v_xor_b32 v{EN+k}, s{TAGP}, v{EN+k}")
    p(f"""v_max3_u32 v{AT}, v{EN}, v{EN+1}, v{EN+2}
    v_max3_u32 v{AT+1}, v{EN+3}, v{EN+4}, v{EN+5}
    v_max3_u32 v{AT}, v{AT}, v{EN+6}, v{EN+7}
    v_max_u32 v{AT}, v{AT}, v{AT+1}
    v_cmp_lt_u32 vcc, 0xfffff, v{AT}
    s_cmp_eq_u64 vcc, 0
    s_cbranch_scc1 L_got
    s_add_u32 s93, s93, 16
    s_cmp_ge_u32 s93, {SPIN_MAX}
    s_cbranch_scc1 L_end
    s_sleep 2
    s_branch L_poll""")
    p.label("L_got")
    stamp(7)
    semwait(S_I, 4, AT+1)
    p(f"""ds_read_u16 v{DISD}, v{DISD}
    v_cmp_lt_u32 vcc, {EMPTY + opt.slot_cap}, v{AT}""")
    if opt.force_slow: p("s_mov_b64 vcc, -1")
    p(f"""s_cmp_lg_u64 vcc, 0
    s_cselect_b32 s{T2}, 0x10000, 0
    s_call_b64 s[{LINK}:{LINK+1}], L_fill""")
    stamp(19)
    semwait(S_QK, 4, AT)
    stamp(4)
    QK0 = H[3]
    for e in range(3):
        for h in range(2):
            p(f"ds_read_b128 {v(QK0+8*e+4*h,4)}, v{QKA+e} offset:{h*256}")
    def raw(i, h, d): return (H[h] + 4*i + d) if i < 8 else (H[2] + 8*(i-8) + 4*h + d)
    for e, slots in ((0, range(0, 4)), (1, range(4, 8)), (2, range(8, 10))):
        p(f"s_waitcnt lgkmcnt({4-2*e})")
        for h in range(2):
            for d in range(4):
                for i in slots:
                    q = QK0 + 8*e + 4*h + d
                    if h == 0 and d == 0: p(f"v_dot2_f32_bf16 v{DV+i}, v{raw(i,h,d)}, v{q}, 0")
                    else: p(f"v_dot2c_f32_bf16 v{DV+i}, v{raw(i,h,d)}, v{q}")
    for rot in (8, 4, 2, 1):
        for i in range(10):
            p(f"v_add_f32_dpp v{DV+i}, v{DV+i}, v{DV+i} row_ror:{rot} row_mask:0xf bank_mask:0xf")
    p(f"s_mov_b32 s{T0}, 0x3db8aa3b")
    for i in range(10): p(f"v_mul_f32 v{DV+i}, s{T0}, v{DV+i}")
    for i in range(10): p(f"v_exp_f32 v{DV+i}, v{DV+i}")
    p(f"""s_mov_b32 s{T0}, 0x3089705f
    v_add_f32 v{AT}, v{DV+8}, v{DV+9}
    v_add_f32 v{S0}, v{DV}, v{DV+1}
    v_add_f32 v{S0+1}, v{DV+2}, v{DV+3}
    v_mov_b32 v{AT+1}, v{AT}
    v_add_f32 v{S0+2}, v{DV+4}, v{DV+5}
    v_add_f32 v{S0+3}, v{DV+6}, v{DV+7}
    v_permlane16_swap_b32 v{AT}, v{AT+1}
    v_add_f32 v{S0}, v{S0}, v{S0+1}
    v_add_f32 v{S0+2}, v{S0+2}, v{S0+3}
    v_add_f32 v{AT}, v{AT}, v{AT+1}
    v_add_f32 v{S0}, s{T0}, v{S0}
    v_add_f32 v{S0+2}, s{T0}, v{S0+2}
    v_add_f32 v{AT}, s{T0}, v{AT}
    v_rcp_f32 v{S0}, v{S0}
    v_rcp_f32 v{S0+2}, v{S0+2}
    v_rcp_f32 v{AT}, v{AT}""")
    for i in range(10):
        r = S0 if i < 4 else (S0+2 if i < 8 else AT)
        p(f"v_mul_f32 v{DV+i}, v{r}, v{DV+i}")
    for k in range(4):
        p(f"v_cvt_pk_bf16_f32 v{S0+k}, v{DV+2*k}, v{DV+2*k+1}")
    p(f"v_cvt_pk_bf16_f32 v{S1}, v{DV+8}, v{DV+9}")
    for k in range(4): p(f"v_and_b32 v{S0+k}, v{M0 if k < 2 else M1}, v{S0+k}")
    p(f"v_and_b32 v{S1}, v{M2}, v{S1}")
    stamp(5)
    def perms(u, t, P):
        for q in range(4):
            p(f"v_perm_b32 v{P+q}, v{H[u]+4*(2*q+1)+(t>>1)}, v{H[u]+4*(2*q)+(t>>1)}, s{SEL1 if t&1 else SEL0}")
    def CB(u, S, first=False):
        h = u & 1
        perms(u, 0, P0)
        for t in range(8):
            if t < 7: perms(u, t+1, P1 if t % 2 == 0 else P0)
            a = ACC + (8*h + t)*4
            p(f"v_mfma_f32_16x16x32_bf16 {v(a,4)}, {v(P0 if t % 2 == 0 else P1,4)}, {v(S,4)}, {'0' if first else v(a,4)}")
    def addrs(src):
        for i in range(8):
            sel = " op_sel:[1,0,0,0]" if i & 1 else ""
            p(f"v_mad_u32_u16 v{AD+i}, v{src + (i>>1)}, s{C512}, v{CG16}{sel}")
    def loads(u, h):
        for i in range(8):
            p(f"buffer_load_dwordx4 {v(H[u]+4*i,4)}, v{AD+i}, s[{SRD_X}:{SRD_X+3}], 0 offen" + (" offset:256" if h else ""))
    pp = [P0, P0+2, P1, P1+2]
    def perm1(n):
        h, t = n >> 3, n & 7
        p(f"v_perm_b32 v{pp[n % 4]}, v{raw(9,h,t>>1)}, v{raw(8,h,t>>1)}, s{SEL1 if t&1 else SEL0}")
    perm1(0); perm1(1)
    for n in range(16):
        if n + 2 < 16: perm1(n+2)
        a = ACC + 4*n
        p(f"v_mfma_f32_16x16x16_bf16 {v(a,4)}, {v(pp[n % 4],2)}, {v(S1,2)}, 0")
    CB(0, S0)
    p(f"""s_cmp_eq_u32 s{RHO}, 0
    s_cbranch_scc1 L_p0""")
    addrs(IDX); loads(0, 0)
    p.label("L_p0")
    CB(1, S0)
    p(f"""s_cmp_eq_u32 s{RHO}, 0
    s_cbranch_scc1 L_p1""")
    loads(1, 1)
    p(f"""s_cmp_eq_u32 s{RHO}, 1
    s_cbranch_scc1 L_p1""")
    addrs(EN); loads(2, 0); loads(3, 1)
    p.label("L_p1")
    p(f"""ds_read_b128 {v(S0,4)}, v{SRD_}
    ds_read_b128 {v(S1,4)}, v{SRD_} offset:4096
    ds_read_b128 {v(IDX,4)}, v{LRD} offset:8192
    v_add_u32 v{LRD}, {3*4096}, v{LRD}
    v_add_u32 v{SRD_}, {2*4096}, v{SRD_}
    s_call_b64 s[{LINK}:{LINK+1}], L_wout""")
    signal(S_AA)
    stamp(6)
    p(f"v_add_u32 v{FW}, {(XB - YB) & 0xffffffff}, v{FW}")
    for i in range(64): p(f"v_mov_b32 v{ACC+i}, 0")
    p(f"""s_cmp_lg_u32 s{OVF}, 0
    s_cbranch_scc1 L_slow_enter""")
    stamp(8)
    p.label("L_round")
    p(f"""s_cmp_eq_u32 s{RHO}, 0
    s_cbranch_scc1 L_round_end
    s_sub_u32 s{RHO}, s{RHO}, 1
    s_call_b64 s[{LINK}:{LINK+1}], L_agg""")
    p.label("L_round_end")
    p(f"""s_cmp_lg_u32 s{MODE}, 0
    s_cbranch_scc1 L_slow_next""")
    p.label("L_A_tail")
    stamp(9)
    p(f"""s_waitcnt lgkmcnt(0)
    v_lshlrev_b32 v{DISD}, 16, v{DISD}
    s_nop 4""")
    for i in range(32):
        p(f"v_pk_mul_f32 {v(ACC+2*i,2)}, {v(ACC+2*i,2)}, {v(DISD,2)} op_sel_hi:[1,0]")
    p(f"s_call_b64 s[{LINK}:{LINK+1}], L_wout")
    signal(S_AL)
    stamp(10)
    p("s_branch L_final")

    p.label("L_slow_enter")
    srd(SRD_SRC, 6, 640000)
    srd(SRD_DST, 8, 640000)
    p.label("L_slow_next")
    p(f"""s_cmp_eq_u32 s{MODE}, 640
    s_cbranch_scc1 L_A_tail
    s_mul_i32 s{T0}, s{MODE}, 1000
    s_add_u32 s{MODE}, s{MODE}, 1
    v_lshl_add_u32 v{AT}, s{W}, 6, v{LANE}
    v_cmp_gt_u32 vcc, 250, v{AT}
    s_mov_b64 s[96:97], vcc
    v_lshlrev_b32 v{AT}, 2, v{AT}
    buffer_load_dword v{EN}, v{AT}, s[{SRD_SRC}:{SRD_SRC+3}], s{T0} offen
    buffer_load_dword v{EN+1}, v{AT}, s[{SRD_DST}:{SRD_DST+3}], s{T0} offen
    v_lshrrev_b32 v{AT}, 4, v{LANE}
    s_lshl_b32 s{T0}, s{W}, 8
    s_add_u32 s{T0}, s{T0}, {SIMG}
    v_lshl_add_u32 v{SRD_}, v{AT}, 10, v{CG16}
    v_add_u32 v{SRD_}, s{T0}, v{SRD_}
    v_or_b32 v{LRD}, 240, v{SRD_}
    s_waitcnt lgkmcnt(0)
    s_call_b64 s[{LINK}:{LINK+1}], L_init
    s_add_u32 s{TR}, s{TR}, 4""")
    signal(S_R)
    semwait(S_R, f"s{TR}", AT)
    p(f"""s_mul_i32 s{T0}, s2, 40
    s_waitcnt vmcnt(0)
    v_subrev_u32 v{EN+1}, s{T0}, v{EN+1}
    v_cmp_gt_u32 vcc, 40, v{EN+1}
    s_and_b64 vcc, vcc, s[96:97]
    v_mul_u32_u24 v{AT}, 26, v{EN+1}
    v_lshrrev_b32 v{AT}, 8, v{AT}
    v_mad_u32_u24 v{AT}, v{AT}, 6, v{EN+1}
    v_lshl_or_b32 v{AT}, v{AT}, 14, v{EN}
    v_mov_b32 v{EN+1}, {EMPTY}
    v_cndmask_b32_e64 v{EN}, v{EN+1}, v{AT}, vcc""")
    for k in range(2, 8): p(f"v_mov_b32 v{EN+k}, {EMPTY}")
    p(f"""s_mov_b32 s{T2}, 0
    s_call_b64 s[{LINK}:{LINK+1}], L_fill
    s_cmp_eq_u32 s{RHO}, 0
    s_cbranch_scc1 L_round_end""")
    addrs(IDX); loads(0, 0); loads(1, 1)
    p(f"""s_cmp_eq_u32 s{RHO}, 1
    s_cbranch_scc1 L_p1s""")
    addrs(EN); loads(2, 0); loads(3, 1)
    p.label("L_p1s")
    p(f"""ds_read_b128 {v(S0,4)}, v{SRD_}
    ds_read_b128 {v(S1,4)}, v{SRD_} offset:4096
    ds_read_b128 {v(IDX,4)}, v{LRD} offset:8192
    v_add_u32 v{LRD}, {3*4096}, v{LRD}
    v_add_u32 v{SRD_}, {2*4096}, v{SRD_}
    s_branch L_round""")

    p.label("L_fill")
    FS, F0, SB, RUN, FWt = H[2]+16, H[2]+24, H[3], H[3]+8, H[3]+16
    TOT = DV + 2
    p(f"s_mov_b32 s{T0}, {EMPTY}")
    for k in range(8):
        p(f"""v_and_b32 v{FS+k}, 0x3fff, v{EN+k}
        v_cmp_gt_u32 s[{MK+2*k}:{MK+2*k+1}], s{T0}, v{EN+k}
        v_lshl_add_u32 v{FWt+k}, v{FS+k}, 1, s{CDIS}
        v_lshrrev_b32 v{SB+k}, 15, v{EN+k}
        ds_read_u16 v{FWt+k}, v{FWt+k}
        v_and_b32 v{SB+k}, 0x18, v{SB+k}
        v_lshlrev_b32 v{AT}, v{SB+k}, v{ONE}
        v_lshrrev_b32 v{F0+k}, 10, v{EN+k}
        v_cndmask_b32_e64 v{AT}, 0, v{AT}, s[{MK+2*k}:{MK+2*k+1}]
        s_bcnt1_i32_b64 s{T1}, s[{MK+2*k}:{MK+2*k+1}]
        s_add_u32 s{T2}, s{T2}, s{T1}""")
        prev = ZERO if k == 0 else RUN + k
        dst = TOT if k == 7 else RUN + k + 1
        p(f"v_add_u32 v{dst}, v{prev}, v{AT}")
    p(f"v_mov_b32 v{AT}, v{TOT}")
    fillers = [f"v_and_b32 v{F0+k}, 0x3f0, v{F0+k}" for k in range(8)]
    for n, dpp in enumerate(["row_shr:1 row_mask:0xf", "row_shr:2 row_mask:0xf", "row_shr:4 row_mask:0xf", "row_shr:8 row_mask:0xf", "row_bcast:15 row_mask:0xa", "row_bcast:31 row_mask:0xc"]):
        if n < 4: p(fillers[2*n] + "\n" + fillers[2*n+1])
        p(f"v_add_u32_dpp v{AT}, v{AT}, v{AT} {dpp} bank_mask:0xf")
    p(f"""s_and_b32 s{T1}, s{TL}, 4
    s_lshl_b32 s{T1}, s{T1}, 1
    v_mov_b32 v{AT+1}, s{T1}
    v_readlane_b32 s{T0}, v{AT}, 63
    v_mov_b32 v{TOT+3}, s{T2}
    v_sub_u32 v{AT}, v{AT}, v{TOT}
    v_mov_b32 v{TOT+2}, s{T0}
    s_mov_b64 exec, 1
    ds_add_rtn_u64 {v(TOT+2,2)}, v{AT+1}, {v(TOT+2,2)} offset:{SEM+CNT}
    s_mov_b64 exec, -1
    v_mov_b32 v{RUN}, 0
    s_add_u32 s{TL}, s{TL}, 4
    s_waitcnt lgkmcnt(0)
    v_readfirstlane_b32 s{T0}, v{TOT+2}
    v_add_u32 v{AT}, s{T0}, v{AT}""")
    for k in range(8):
        p(f"""v_add_u32 v{RUN+k}, v{RUN+k}, v{AT}
        v_bfe_u32 v{RUN+k}, v{RUN+k}, v{SB+k}, 8
        v_lshlrev_b32 v{SB+k}, 1, v{RUN+k}
        v_lshrrev_b32 v{RUN+k}, 3, v{RUN+k}
        v_and_or_b32 v{SB+k}, v{SB+k}, 14, s{CSIMG}
        v_lshl_add_u32 v{SB+k}, v{RUN+k}, 10, v{SB+k}
        v_add_u32 v{F0+k}, v{F0+k}, v{SB+k}
        v_or_b32 v{SB+k}, 240, v{F0+k}
        s_mov_b64 exec, s[{MK+2*k}:{MK+2*k+1}]
        ds_write_b16 v{F0+k}, v{FWt+k}
        ds_write_b16 v{SB+k}, v{FS+k}
        s_mov_b64 exec, -1""")
    signal(S_L)
    semwait(S_L, f"s{TL}", TOT)
    p(f"""ds_read_b64 {v(TOT+2,2)}, v{AT+1} offset:{SEM+CNT}
    ds_read_b128 {v(IDX,4)}, v{LRD}
    ds_read_b128 {v(EN,4)}, v{LRD} offset:4096
    s_lshl_b32 s{T2}, s{W}, 3
    s_waitcnt lgkmcnt(0)
    v_sad_u8 v{AT}, v{TOT+2}, 0, 0
    v_readfirstlane_b32 s{RHO}, v{TOT+2}
    v_cmp_ne_u32 vcc, v{AT}, v{TOT+3}
    s_lshr_b32 s{RHO}, s{RHO}, s{T2}
    s_and_b32 s{RHO}, s{RHO}, 255
    s_add_u32 s{RHO}, s{RHO}, 31
    s_lshr_b32 s{RHO}, s{RHO}, 5
    s_and_b32 s{OVF}, vcc_lo, 1
    s_cselect_b32 s{RHO}, 0, s{RHO}
    s_setpc_b64 s[{LINK}:{LINK+1}]""")

    p.label("L_init")
    p(f"""v_and_b32 v{AT}, 15, v{LANE}
    v_cmp_eq_u32 vcc, 15, v{AT}
    s_and_b32 s{T0}, s{TL}, 4
    s_lshl_b32 s{T0}, s{T0}, 1
    v_mov_b32 v{AT+1}, s{T0}
    v_cndmask_b32_e64 v{S0}, 0, -1, vcc
    v_cndmask_b32_e64 v{S0+1}, 0, -1, vcc
    v_cndmask_b32_e64 v{S0+2}, 0, -1, vcc
    v_cndmask_b32_e64 v{S0+3}, 0, -1, vcc
    ds_write_b32 v{AT+1}, v{ZERO} offset:{SEM+CNT}
    ds_write_b32 v{AT+1}, v{ZERO} offset:{SEM+CNT+4}""")
    for k in range(8): p(f"ds_write_b128 v{SRD_}, {v(S0,4)} offset:{k*4096}")
    p(f"s_setpc_b64 s[{LINK}:{LINK+1}]")

    p.label("L_wout")
    p("""s_nop 7
    s_mov_b32 exec_lo, 0x03ff03ff
    s_mov_b32 exec_hi, 0x03ff03ff""")
    for h in range(2):
        for r in range(4):
            d = P0 if r % 2 == 0 else P1
            for k in range(4):
                p(f"v_cvt_pk_bf16_f32 v{d+k}, v{ACC+(8*h+2*k)*4+r}, v{ACC+(8*h+2*k+1)*4+r}")
            p(f"ds_write_b128 v{FW}, {v(d,4)} offset:{(4*h+r)*2560}")
    p(f"""s_mov_b64 exec, -1
    s_setpc_b64 s[{LINK}:{LINK+1}]""")

    p.label("L_agg")
    for pi in range(2):
        S = S0 if pi == 0 else S1
        L1, L2, L3, L4, L5 = newl("a"), newl("a"), newl("a"), newl("a"), newl("a")
        p(f"""s_cmp_eq_u32 s{RHO}, 0
        s_waitcnt vmcnt(24) lgkmcnt(1)
        s_cbranch_scc0 {L1}
        s_waitcnt vmcnt(8)""")
        p.label(L1)
        CB(2*pi, S)
        p(f"""s_cmp_lt_u32 s{RHO}, 2
        s_cbranch_scc1 {L2}
        s_waitcnt lgkmcnt(0)""")
        addrs(IDX); loads(2*pi, 0)
        p(f"""ds_read_b128 {v(IDX,4)}, v{LRD}
        v_add_u32 v{LRD}, 4096, v{LRD}
        s_waitcnt vmcnt(24)
        s_branch {L3}""")
        p.label(L2)
        p(f"""s_cmp_eq_u32 s{RHO}, 0
        s_waitcnt vmcnt(16)
        s_cbranch_scc0 {L3}
        s_waitcnt vmcnt(0)""")
        p.label(L3)
        CB(2*pi+1, S)
        p(f"""s_cmp_lt_u32 s{RHO}, 2
        s_cbranch_scc1 {L4}""")
        loads(2*pi+1, 1)
        p(f"""ds_read_b128 {v(S,4)}, v{SRD_}
        v_add_u32 v{SRD_}, 4096, v{SRD_}""")
        p.label(L4)
        p(f"""s_cmp_eq_u32 s{RHO}, 0
        s_cbranch_scc1 L_agg_ret
        s_sub_u32 s{RHO}, s{RHO}, 1""")
        if pi == 1: p("s_branch L_agg")
    p.label("L_agg_ret")
    p(f"s_setpc_b64 s[{LINK}:{LINK+1}]")

    p.label("L_final")
    p(f"""v_lshrrev_b32 v4, 5, v{LANE}
    s_lshl_b32 s{T0}, s{WV}, 1
    v_add_u32 v4, s{T0}, v4
    v_and_b32 v5, 31, v{LANE}
    v_lshrrev_b32 v6, 3, v5
    v_xor_b32 v7, v4, v5
    v_and_b32 v7, 7, v7
    v_lshlrev_b32 v7, 4, v7
    v_lshl_add_u32 v7, v4, 7, v7
    v_lshl_add_u32 v7, v6, 14, v7
    v_lshrrev_b32 v6, 1, v6
    v_lshl_add_u32 v7, v6, 7, v7
    v_lshlrev_b32 v5, 4, v5
    v_lshl_add_u32 v5, v4, 9, v5
    s_mul_i32 s{T0}, s2, 20480
    s_add_u32 s{T1}, s{T0}, 8192
    s_add_u32 s{T2}, s{T0}, 16384
    s_waitcnt lgkmcnt(0)
    s_barrier
    ds_read_b128 v[8:11], v7 offset:{RING}
    ds_read_b128 v[12:15], v7 offset:{RING+2048}
    s_cmp_ge_u32 s{WV}, 4
    s_cbranch_scc1 L_fin2
    ds_read_b128 v[16:19], v7 offset:{RING+4096}
    s_waitcnt lgkmcnt(0)
    buffer_store_dwordx4 v[16:19], v5, s[{SRD_OUT}:{SRD_OUT+3}], s{T2} offen""")
    p.label("L_fin2")
    p(f"""s_waitcnt lgkmcnt(0)
    buffer_store_dwordx4 v[8:11], v5, s[{SRD_OUT}:{SRD_OUT+3}], s{T0} offen
    buffer_store_dwordx4 v[12:15], v5, s[{SRD_OUT}:{SRD_OUT+3}], s{T1} offen""")
    stamp(11)
    if opt.stretch and opt.stretch[1] == -2:
        p("s_waitcnt vmcnt(0)")
        stamp(19)
    stamp_out()
    stretch()
    p("s_endpgm")

    p.label("L_upd")
    p(f"""s_cmp_lg_u32 s{WV}, 0
    s_cbranch_scc1 L_end
    s_waitcnt lgkmcnt(0)
    global_load_dword v15, v{ZERO}, s[28:29] sc1
    s_add_u32 s60, s28, {FLAG0}
    s_addc_u32 s61, s29, 0
    s_mov_b32 s62, {NWG*4}
    s_mov_b32 s63, 0x20000
    s_waitcnt vmcnt(0)
    v_readfirstlane_b32 s64, v15
    s_lshr_b32 s64, s64, 20
    s_add_u32 s65, s64, {TAGINC}
    s_lshl_b32 s65, s65, 20
    s_or_b32 s66, s65, {FLAGLOW}
    s_mov_b32 s70, -1
    s_mov_b32 s71, {(1 << (NWG - 192 - 32)) - 1}""")
    p.label("L_upd_poll")
    p("s_sleep 16")
    for k in range(4):
        p(f"buffer_load_dword v{16+k}, v4, s[60:63], 0 offen offset:{k*256} sc1")
    p(f"""s_waitcnt vmcnt(0)
    v_cmp_ne_u32 s[72:73], s66, v16
    v_cmp_ne_u32 s[74:75], s66, v17
    v_cmp_ne_u32 s[76:77], s66, v18
    v_cmp_ne_u32 s[78:79], s66, v19
    s_or_b64 s[72:73], s[72:73], s[74:75]
    s_and_b64 s[78:79], s[78:79], s[70:71]
    s_or_b64 s[72:73], s[72:73], s[76:77]
    s_or_b64 s[72:73], s[72:73], s[78:79]
    s_cbranch_scc0 L_upd_go
    s_add_u32 s93, s93, 32
    s_cmp_ge_u32 s93, {SPIN_MAX}
    s_cbranch_scc0 L_upd_poll
    s_endpgm""")
    p.label("L_upd_go")
    p(f"""v_mov_b32 v6, s65
    s_mov_b64 exec, 1
    global_store_dword v{ZERO}, v6, s[28:29] sc0 sc1""")
    p.label("L_end")
    p("s_endpgm")

    a, b = p.finish()
    hdr = open(os.path.join(os.path.dirname(os.path.abspath(__file__)), "header.txt")).read()
    out = hdr + f"; @launch grid=({NWG+1},1,1) block=(512,1,1) lds={LDS_TOTAL}\n"
    out += f""".amdgcn_target "amdgcn-amd-amdhsa--gfx950"
.text
.globl {KNAME}
.p2align 8
.type {KNAME},@function
{KNAME}:
"""
    out += p.text()
    out += f""".section .rodata,"a"
.p2align 6
.amdhsa_kernel {KNAME}
  .amdhsa_next_free_vgpr 256
  .amdhsa_next_free_sgpr 102
  .amdhsa_accum_offset 256
  .amdhsa_group_segment_fixed_size 0
  .amdhsa_kernarg_size 104
  .amdhsa_user_sgpr_count 2
  .amdhsa_user_sgpr_kernarg_segment_ptr 1
  .amdhsa_system_sgpr_workgroup_id_x 1
  .amdhsa_float_denorm_mode_32 3
.end_amdhsa_kernel
"""
    sys.stderr.write(f"auto nops: linear {a}, edges {b}; {sum(1 for i in p.ins if i.states)} instructions\n")
    return out

if __name__ == "__main__":
    import argparse
    ap = argparse.ArgumentParser()
    ap.add_argument("-o", default="gather_scatter__hybrid_graph_tf_exphormer__graph.s")
    ap.add_argument("--stamps", action="store_true")
    ap.add_argument("--dbgstamps", action="store_true")
    ap.add_argument("--stretch", default="")
    ap.add_argument("--force-slow", action="store_true")
    ap.add_argument("--slot-cap", type=int, default=31)
    a = ap.parse_args()
    Opt.stamps = a.stamps or a.dbgstamps; Opt.dbgstamps = a.dbgstamps; Opt.force_slow = a.force_slow
    if a.stretch: Opt.stretch = [int(x) for x in a.stretch.split(',')]; Opt.stamps = True
    Opt.slot_cap = a.slot_cap
    open(a.o, "w").write(build())
```
